```python
import torch

def _softmax(x, axis=-1):
    return torch.softmax(x, dim=axis)

def _gelu(x):
    return torch.nn.functional.gelu(x, approximate='tanh')

def _silu(x):
    return torch.nn.functional.silu(x)

def _sigmoid(x):
    return torch.sigmoid(x)

def _layernorm(x, axis=-1, eps=1e-05):
    m = x.mean(dim=axis, keepdim=True)
    v = x.var(dim=axis, keepdim=True, unbiased=False)
    return (x - m) / torch.sqrt(v + eps)

def _scatter_add(tgt, idx, src, axis=0):
    return tgt.clone().index_add_(axis, idx, src)

def _segment_sum(src, seg, n):
    out = torch.zeros((n,) + src.shape[1:], dtype=src.dtype)
    return out.index_add_(0, seg, src)

def _pad(x, pw):
    flat = tuple((v for pair in reversed(pw) for v in pair))
    return torch.nn.functional.pad(x, flat)
kernel_name = 'adaLN_cond__sliding_block_cached__dense_activation_relu__prompt'

def setup_inputs():

    _w = lambda a: (lambda t: t.to(torch.bfloat16) if t.is_floating_point() else t)(torch.as_tensor(a))

    def _A_setup():
        B, Sq, D = (1, 2048, 1024)
        Hq, Hkv, Sk, Dh = (32, 4, 2048, 128)
        assert Hq % Hkv == 0, (Hq, Hkv)
        return {'x': _w((lambda *s: torch.randn(*s, dtype=torch.bfloat16) * 0.05)(B, Sq, D)), 'k_cache': _w((lambda *s: torch.randn(*s, dtype=torch.bfloat16) * 3.2)(B, Hkv, Sk, Dh)), 'v_cache': _w((lambda *s: torch.randn(*s, dtype=torch.bfloat16) * 0.4)(B, Hkv, Sk, Dh)), 'wq': _w((lambda *s: torch.randn(*s, dtype=torch.bfloat16) * 3.2)(D, Hq * Dh) * D ** (-0.5)), 'wo': _w((lambda *s: torch.randn(*s, dtype=torch.bfloat16) * 0.4)(Hq * Dh, D) * (Hq * Dh) ** (-0.5))}
    _A_in = _A_setup()

    def _B_setup():
        B, S, D, Dff = (1, 2048, 1024, 3584)
        return {'x': _w((lambda *s: torch.randn(*s, dtype=torch.bfloat16) * 0.05)(B, S, D)), 'w1': _w((lambda *s: torch.randn(*s, dtype=torch.bfloat16) * 0.05)(D, Dff)), 'w2': _w((lambda *s: torch.randn(*s, dtype=torch.bfloat16) * 0.05)(Dff, D))}
    _B_in = _B_setup()
    return {'A_x': _A_in['x'], 'A_k_cache': _A_in['k_cache'], 'A_v_cache': _A_in['v_cache'], 'A_wq': _A_in['wq'], 'A_wo': _A_in['wo'], 'B_x': _B_in['x'], 'B_w1': _B_in['w1'], 'B_w2': _B_in['w2'], 'c': _w((lambda *s: torch.randn(*s, dtype=torch.bfloat16) * 0.1)(1, 1024) * 8.0), 'w_mod': _w((lambda *s: torch.randn(*s, dtype=torch.bfloat16) * 0.1)(1024, 6 * 1024) * 1024 ** (-0.5) * 8.0)}

def reference(A_x, A_k_cache, A_v_cache, A_wq, A_wo, B_x, B_w1, B_w2, c, w_mod):

    def _A_ref(x, k_cache, v_cache, wq, wo):
        B, Sq, D = x.shape
        Hq, Dh = (32, 128)
        Hkv, Sk = (k_cache.shape[1], k_cache.shape[2])
        W = min(4096, max(256, Sk // 4))
        rep = Hq // Hkv
        q = (lambda x, *d: x.permute(*d))((x @ wq).reshape(B, Sq, Hq, Dh), 0, 2, 1, 3)
        k = (lambda x, n, axis: torch.repeat_interleave(x, n, dim=axis))(k_cache[:, :, Sk - W:, :], rep, axis=1)
        v = (lambda x, n, axis: torch.repeat_interleave(x, n, dim=axis))(v_cache[:, :, Sk - W:, :], rep, axis=1)
        scores = torch.einsum('bhqd,bhkd->bhqk', q, k) * Dh ** (-0.5)
        p = _softmax(scores, axis=-1)
        o = torch.einsum('bhqk,bhkd->bhqd', p, v)
        return (lambda x, *d: x.permute(*d))(o, 0, 2, 1, 3).reshape(B, Sq, Hq * Dh) @ wo

    def _B_ref(x, w1, w2):
        h = torch.einsum('bsd,df->bsf', x, w1)
        zero = torch.zeros_like(h)
        h = torch.maximum(h, zero)
        return torch.einsum('bsf,fd->bsd', h, w2)
    x = A_x
    mod = (_silu(c) @ w_mod).reshape(c.shape[0], 6, 1, -1)
    sa, ca, ga, sb, cb, gb = (mod[:, 0].clone(), mod[:, 1].clone(), mod[:, 2].clone(), mod[:, 3].clone(), mod[:, 4].clone(), mod[:, 5].clone())
    h = _layernorm(x, axis=-1) * (1 + ca) + sa
    x = x + ga * _A_ref(h, A_k_cache, A_v_cache, A_wq, A_wo)
    h = _layernorm(x, axis=-1) * (1 + cb) + sb
    x = x + gb * _B_ref(h, B_w1, B_w2)
    return x
```

```python
import re

class Asm:
    def __init__(self):
        self.lines = []
        self.nlabel = 0
    def __call__(self, s, *a):
        for l in s.split('\n'):
            l = l.strip()
            if l:
                self.lines.append(l)
    def raw(self, s):
        self.lines.append(('RAW', s))
    def c(self, s):
        self.lines.append('; ' + s)
    def label(self, name):
        self.lines.append(name + ':')
    def newlabel(self, base='L'):
        self.nlabel += 1
        return f'{base}_{self.nlabel}'
    def text(self):
        out = []
        for l in self.lines:
            if isinstance(l, tuple):
                out.append(l[1].rstrip('\n'))
            elif l.endswith(':') or l.startswith('.') or l.startswith(';'):
                out.append(l)
            else:
                out.append(' ' + l)
        return '\n'.join(out) + '\n'

def v(n, cnt=1):
    return f'v{n}' if cnt == 1 else f'v[{n}:{n+cnt-1}]'
def a(n, cnt=1):
    return f'a{n}' if cnt == 1 else f'a[{n}:{n+cnt-1}]'
def s(n, cnt=1):
    return f's{n}' if cnt == 1 else f's[{n}:{n+cnt-1}]'

def kernel_header(name):
    return f'''.globl {name}
.p2align 8
.type {name},@function
{name}:
'''

def kernel_desc(name, vgpr, agpr=0, sgpr=102, idy=False, kernarg=104):
    acc = (vgpr + 3) // 4 * 4
    nfv = acc + agpr if agpr else vgpr
    t = f'''.amdhsa_kernel {name}
  .amdhsa_next_free_vgpr {nfv}
  .amdhsa_next_free_sgpr {sgpr}
  .amdhsa_accum_offset {acc}
  .amdhsa_group_segment_fixed_size 0
  .amdhsa_kernarg_size {kernarg}
  .amdhsa_user_sgpr_count 2
  .amdhsa_user_sgpr_kernarg_segment_ptr 1
  .amdhsa_system_sgpr_workgroup_id_x 1
'''
    if idy:
        t += '  .amdhsa_system_sgpr_workgroup_id_y 1\n'
    t += '''  .amdhsa_float_denorm_mode_32 3
  .amdhsa_float_denorm_mode_16_64 3
  .amdhsa_ieee_mode 0
  .amdhsa_dx10_clamp 0
.end_amdhsa_kernel
'''
    return t

def metadata(kernels, kernarg=104):
    t = '.amdgpu_metadata\n---\namdhsa.version: [1, 2]\namdhsa.kernels:\n'
    for (n, vg, sg, wg) in kernels:
        t += f'''  - .name: {n}
    .symbol: {n}.kd
    .kernarg_segment_size: {kernarg}
    .kernarg_segment_align: 8
    .group_segment_fixed_size: 0
    .private_segment_fixed_size: 0
    .wavefront_size: 64
    .sgpr_count: {sg}
    .vgpr_count: {vg}
    .max_flat_workgroup_size: {wg}
    .args:
      - {{.name: kernargs, .size: {kernarg}, .offset: 0, .value_kind: by_value}}
'''
    t += '...\n.end_amdgpu_metadata\n'
    return t
```

```python
from asmlib import *
import math
KA = dict(x=0, kc=8, vc=16, wq=24, wo=32, bx=40, w1=48, w2=56, c=64, wmod=72, out=80, dbg=88, ws=96)
WS_H   = 0x0000000
WS_XF  = 0x0400000
WS_O   = 0x0800000
WS_X1  = 0x1800000
WS_Y   = 0x1C00000
WS_H1  = 0x2000000
WS_KV  = 0x3000000
WS_MOD = 0x3100000
WS_U   = 0x3108000
WS_V   = 0x310C000
WS_ST  = 0x3110000
WS_END = 0x3200000
WS_SIZE = 0x4000000
CQ = math.log2(math.e) / math.sqrt(128.0)
import struct
def f32bits(x): return struct.unpack('<I', struct.pack('<f', x))[0]
def hexf(x): return hex(f32bits(x))

def srd(A, sreg, sptr, nbytes):
    if sreg != sptr:
        A(f's_mov_b32 s{sreg}, s{sptr}')
        A(f's_mov_b32 s{sreg+1}, s{sptr+1}')
    A(f's_mov_b32 s{sreg+2}, {hex(nbytes)}')
    A(f's_mov_b32 s{sreg+3}, 0x20000')

def load_ptr(A, sreg, name):
    A(f's_load_dwordx2 s[{sreg}:{sreg+1}], s[0:1], {KA[name]}')

def lane_wave(A, v_lane='v1', s_wave='s30', vt='v2'):
    A(f'v_and_b32 {v_lane}, 63, v0')
    A(f'v_lshrrev_b32 {vt}, 6, v0')
    A('s_nop 0')
    A(f'v_readfirstlane_b32 {s_wave}, {vt}')

def xsum_rows(A, regs, tmp, op='v_add_f32'):
    for r, t in zip(regs, tmp): A(f'v_mov_b32 {t}, {r}')
    for r, t in zip(regs, tmp): A(f'v_permlane16_swap_b32 {r}, {t}')
    for r, t in zip(regs, tmp): A(f'{op} {r}, {r}, {t}')
    for r, t in zip(regs, tmp): A(f'v_mov_b32 {t}, {r}')
    for r, t in zip(regs, tmp): A(f'v_permlane32_swap_b32 {r}, {t}')
    for r, t in zip(regs, tmp): A(f'{op} {r}, {r}, {t}')

def unpack_lo(A, d, s_): A(f'v_lshlrev_b32 {d}, 16, {s_}')
def unpack_hi(A, d, s_): A(f'v_and_b32 {d}, 0xffff0000, {s_}')

STAMPS = False
import sys
def _st(): return sys.modules[__name__].STAMPS
WS_TS = 0x3800000
def stamp(A, i):
    if _st():
        A(f's_memrealtime s[{84+2*i}:{85+2*i}]')
def stamp_flush(A, launch_idx, n):
    if not _st(): return
    lab = A.newlabel('tsf')
    A('s_waitcnt lgkmcnt(0)')
    A('s_mov_b64 exec, -1')
    A(f's_cmp_eq_u32 s30, 0\ns_cbranch_scc0 {lab}')
    for i in range(8):
        A(f'v_mov_b32 v{2+i}, s{84+2*i}' if i < n else f'v_mov_b32 v{2+i}, 0')
    A(f's_lshl_b32 s82, s83, 5')
    A(f's_add_u32 s82, s82, {WS_TS + launch_idx*0x4000}')
    A('v_mov_b32 v1, 0')
    A('s_mov_b64 exec, 1')
    A('buffer_store_dwordx4 v[2:5], v1, s[8:11], s82 offen')
    A('buffer_store_dwordx4 v[6:9], v1, s[8:11], s82 offen offset:16')
    A.label(lab)
def stamp_begin(A):
    if _st():
        A('s_mov_b32 s83, s2')
        stamp(A, 0)
```

```python
from asmlib import *

class GemmCfg:
    def __init__(self, **kw):
        self.shape = 32
        self.FEAT = 128
        self.NTB = 2
        self.BK = 64
        self.NS = 4
        self.R = 8
        self.K = 1024
        self.wstride = 8192
        self.acc = 128; self.acc_kind = 'v'
        self.act = 0; self.act_kind = 'a'
        self.wf = 64; self.wf_kind = 'a'
        self.v_tr = 4
        self.v_dma = 2
        self.v_act = 12
        self.s_w = 8
        self.s_a = 12
        self.s_woff = 20
        self.s_aoff = 26
        self.s_m0 = 27
        self.s_cnt = 28
        self.s_tmp = 29
        self.lds_base = 0
        self.name = 'g'
        self.order = 'f'
        self.tmpv = 40
        self.stagger = False
        self.__dict__.update(kw)
        self.kstep = 16 if self.shape == 32 else 32
        self.NFB = self.FEAT // self.shape
        self.KT = self.BK // self.kstep
        self.nks = self.K // self.kstep
        self.accn = 16 if self.shape == 32 else 4
        self.rowb = self.FEAT * 2
        self.stage_bytes = self.BK * self.rowb
        self.npiece = self.stage_bytes // 1024 // 4
        self.rows_per_piece = 1024 // self.rowb
        self.ntr = self.NFB if self.shape == 32 else min(self.NFB, 8)
    def reg(self, kind, base, n):
        return v(base, n) if kind == 'v' else a(base, n)
    def accbase(self, fb, tb):
        return self.acc + (fb * self.NTB + tb) * self.accn
    def accreg(self, fb, tb):
        return self.reg(self.acc_kind, self.accbase(fb, tb), self.accn)
    def wreg(self, buf, fb, sub=None):
        base = self.wf + (buf * self.NFB + fb) * 4
        if sub is None: return self.reg(self.wf_kind, base, 4)
        return self.reg(self.wf_kind, base + 2 * sub, 2)
    def actreg(self, slot, tb):
        return self.reg(self.act_kind, self.act + (slot * self.NTB + tb) * 4, 4)
    def mfma(self):
        return 'v_mfma_f32_32x32x16_bf16' if self.shape == 32 else 'v_mfma_f32_16x16x32_bf16'
    def mfma_order(self, st=0):
        if self.order == 'f':
            return [(f, t) for f in range(self.NFB) for t in range(self.NTB)]
        if self.order == 'sf':
            return [(f, t if f % 2 == 0 else self.NTB-1-t) for f in range(self.NFB) for t in range(self.NTB)]

def emit_addr_setup(A, c, v_lane, s_wave, s_featbyte, s_tb0):
    t0, t1, t2, t3 = [f'v{c.tmpv+i}' for i in range(4)]
    lpr = c.rowb // 16
    sh = lpr.bit_length() - 1
    A(f'v_lshrrev_b32 {t0}, {sh}, {v_lane}')
    A(f'v_and_b32 {t1}, {lpr-1}, {v_lane}')
    if c.shape == 32:
        if c.rowb == 256: A(f'v_and_b32 {t2}, 3, {t0}')
        else: A(f'v_bfe_u32 {t2}, {t0}, 1, 1')
        A(f'v_lshlrev_b32 {t2}, 2, {t2}')
    else:
        if c.rowb == 256:
            A(f'v_and_b32 {t2}, 3, {t0}')
        else:
            A(f'v_bfe_u32 {t2}, {t0}, 1, 2')
        A(f'v_lshlrev_b32 {t2}, 1, {t2}')
    A(f'v_xor_b32 {t1}, {t1}, {t2}')
    rows_per_wave = c.npiece * c.rows_per_piece
    A(f's_mul_i32 s{c.s_tmp}, {s_wave}, {rows_per_wave}')
    A(f'v_add_u32 {t0}, s{c.s_tmp}, {t0}')
    A(f's_mov_b32 s{c.s_tmp}, {c.wstride}')
    A(f'v_mul_lo_u32 {t0}, {t0}, s{c.s_tmp}')
    A(f'v_add_u32 {t0}, {s_featbyte}, {t0}')
    A(f'v_lshl_add_u32 v{c.v_dma}, {t1}, 4, {t0}')
    if c.shape == 16 and c.rowb == 256:
        A(f'v_xor_b32 {t1}, 8, {t1}')
        A(f'v_lshl_add_u32 v{c.v_dma+1}, {t1}, 4, {t0}')
    A(f's_mul_i32 s{c.s_m0}, {s_wave}, {c.npiece*1024}')
    if c.lds_base:
        A(f's_add_u32 s{c.s_m0}, s{c.s_m0}, {c.lds_base}')
    if c.shape == 32:
        A(f'v_lshrrev_b32 {t0}, 5, {v_lane}')
        A(f'v_lshlrev_b32 {t0}, 3, {t0}')
        A(f'v_bfe_u32 {t1}, {v_lane}, 2, 2')
        A(f'v_add_u32 {t0}, {t0}, {t1}')
        A(f'v_mul_u32_u24 {t0}, {c.rowb}, {t0}')
        A(f'v_bfe_u32 {t2}, {v_lane}, 4, 1')
        A(f'v_lshlrev_b32 {t2}, 5, {t2}')
        A(f'v_add_u32 {t0}, {t0}, {t2}')
        A(f'v_and_b32 {t2}, 1, {v_lane}')
        A(f'v_lshlrev_b32 {t2}, 4, {t2}')
        A(f'v_bfe_u32 {t3}, {v_lane}, 1, 1')
        A(f'v_lshlrev_b32 {t3}, 3, {t3}')
        A(f'v_add3_u32 {t0}, {t0}, {t2}, {t3}')
        if c.lds_base: A(f'v_add_u32 {t0}, {c.lds_base}, {t0}')
        if c.rowb == 128: A(f'v_bfe_u32 {t1}, {v_lane}, 3, 1')
        for fb in range(c.NFB):
            A(f'v_xor_b32 {t2}, {fb}, {t1}')
            A(f'v_lshlrev_b32 {t2}, 6, {t2}')
            A(f'v_add_u32 v{c.v_tr+fb}, {t0}, {t2}')
    else:
        A(f'v_lshrrev_b32 {t1}, 2, {v_lane}')
        A(f'v_mul_u32_u24 {t0}, {c.rowb}, {t1}')
        A(f'v_and_b32 {t2}, 3, {v_lane}')
        A(f'v_lshl_add_u32 {t0}, {t2}, 3, {t0}')
        if c.lds_base: A(f'v_add_u32 {t0}, {c.lds_base}, {t0}')
        if c.rowb == 256: A(f'v_and_b32 {t1}, 7, {t1}')
        else: A(f'v_bfe_u32 {t1}, {t1}, 1, 2')
        for fb in range(c.NFB):
            A(f'v_xor_b32 {t2}, {fb}, {t1}')
            A(f'v_lshlrev_b32 {t2}, 5, {t2}')
            A(f'v_add_u32 v{c.v_tr+fb}, {t0}, {t2}')
    A(f'v_lshlrev_b32 {t0}, 4, {v_lane}')
    A(f's_mul_i32 s{c.s_tmp}, {s_tb0}, {c.nks*1024}')
    for tb in range(c.NTB):
        A(f'v_add_u32 v{c.v_act+tb}, s{c.s_tmp}, {t0}')
        if tb + 1 < c.NTB:
            A(f's_add_u32 s{c.s_tmp}, s{c.s_tmp}, {c.nks*1024}')

def dma_piece(c, stage, p):
    ins = []
    imm = (p % 4) * 1024
    if p % 4 == 0:
        ins.append(f's_add_u32 m0, s{c.s_m0}, {stage*c.stage_bytes + p*1024}')
    extra = p * c.rows_per_piece * c.wstride - imm
    if extra:
        ins.append(f's_add_u32 s{c.s_tmp}, s{c.s_woff}, {extra}')
        so = c.s_tmp
    else:
        so = c.s_woff
        if p % 4 == 0: ins.append('s_nop 0')
    off = f' offset:{imm}' if imm else ''
    vd = c.v_dma + (p % 2 if (c.shape == 16 and c.rowb == 256) else 0)
    ins.append(f'buffer_load_dwordx4 v{vd}, s[{c.s_w}:{c.s_w+3}], s{so} offen{off} lds')
    if p == c.npiece - 1:
        ins.append(f's_add_u32 s{c.s_woff}, s{c.s_woff}, {c.BK*c.wstride}')
    return ins

def act_loads(c, slot, ksmod):
    ins = []
    for tb in range(c.NTB):
        off = f' offset:{ksmod*1024}' if ksmod else ''
        ins.append(f'buffer_load_dwordx4 {c.actreg(slot, tb)}, v{c.v_act+tb}, s[{c.s_a}:{c.s_a+3}], s{c.s_aoff} offen{off}')
    if ksmod == 3:
        ins.append(f's_add_u32 s{c.s_aoff}, s{c.s_aoff}, 4096')
    return ins

def tr_reads(c, buf, stage, ks):
    ins = []
    for fb in range(c.NFB):
        for sub in range(2):
            if c.shape == 32:
                off = stage*c.stage_bytes + (ks*16 + sub*4) * c.rowb
            else:
                off = stage*c.stage_bytes + (ks*32 + sub*16) * c.rowb
            ins.append(f'ds_read_b64_tr_b16 {c.wreg(buf, fb, sub)}, v{c.v_tr+fb} offset:{off}')
    return ins

def pieces_at_step(c, ks):
    pos = (ks + 1) % c.KT
    per = c.npiece / c.KT
    lo = int(pos * per + 1e-9); hi = int((pos + 1) * per + 1e-9)
    return list(range(lo, hi))

def emit_prologue_loads(A, c):
    A(f's_mov_b32 s{c.s_woff}, 0')
    A(f's_mov_b32 s{c.s_aoff}, {hex(getattr(c, "act_base", 0))}')
    order = []
    sl = 0
    per = -(-(c.R - 1) // (c.NS - 1))
    nfirst = None
    for T in range(c.NS - 1):
        for p in range(c.npiece):
            order += dma_piece(c, T, p)
        for q in range(per):
            if sl < c.R - 1:
                order += act_loads(c, sl, sl % 4); sl += 1
        if T == 0: nfirst = count_vmem(order)
    assert sl == c.R - 1
    for p in pieces_at_step(c, c.KT - 1):
        order += dma_piece(c, c.NS - 1, p)
    for i in order: A(i)
    c.pro_order = [i for i in order if i.startswith('buffer_')]
    return count_vmem(order) - nfirst, per

def count_vmem(ins):
    return sum(1 for i in ins if i.startswith('buffer_'))

def spread(items, gaps, lo, hi):
    n = len(items)
    for i, grp in enumerate(items):
        g = lo + (i * (hi - lo)) // max(n, 1)
        gaps[g] += grp

def build_fills(c):
    unroll_tiles = c.NS
    while (unroll_tiles * c.KT) % c.R or (unroll_tiles * c.KT) % 4: unroll_tiles *= 2
    steps = unroll_tiles * c.KT
    nm = c.NFB * c.NTB
    fills = []
    for st in range(steps):
        T, ks = divmod(st, c.KT)
        gaps = [[] for _ in range(nm)]
        nT, nks_ = divmod(st + 1, c.KT)
        trs = tr_reads(c, (st + 1) % 2, nT % c.NS, nks_)
        al = act_loads(c, (st - 1) % c.R, (st + c.R - 1) % 4)
        vm = []
        for ins in al:
            if ins.startswith('buffer'): vm.append([ins])
            else: vm[-1].append(ins)
        Tp = T + c.NS if ks == c.KT - 1 else T + c.NS - 1
        for p in pieces_at_step(c, ks):
            vm.append(dma_piece(c, Tp % c.NS, p))
        if c.layout == 0:
            spread([[t] for t in trs], gaps, 0, nm // 2)
            spread(vm, gaps, nm // 2, nm)
        elif c.layout == 1:
            spread([[t] for t in trs], gaps, 0, (nm * 3) // 4)
            spread(vm, gaps, 0, nm)
        fills.append(gaps)
    return fills, steps

def emit_loop(A, c, npro_after=0):
    fills, steps = build_fills(c)
    assert c.nks % steps == 0
    niter = c.nks // steps
    nv = [sum(count_vmem(g) for g in f) for f in fills]
    def vm_after_act(st):
        src = (st - (c.R - 1)) % steps
        flat = [i for g in fills[src] for i in g]
        idx = max(j for j, i in enumerate(flat) if i.startswith('buffer') and not i.endswith('lds'))
        n = count_vmem(flat[idx+1:])
        for d in range(1, c.R - 1):
            n += nv[(src + d) % steps]
        return n
    def vm_after_dma(st):
        src = st - (c.NS - 2) * c.KT - 1
        while not pieces_at_step(c, src % c.KT): src -= 1
        flat = [i for g in fills[src % steps] for i in g]
        idx = max(j for j, i in enumerate(flat) if i.endswith('lds'))
        n = count_vmem(flat[idx+1:])
        for d in range(src + 1, st):
            n += nv[d % steps]
        return n
    def simulate(n0):
        seq = []; cnt = {'a': 0, 'd': 0}
        def tag(ins):
            if ins.endswith('lds') and f's[{c.s_w}:' not in ins:
                tg = ('x', 0)
            elif ins.endswith('lds'):
                tg = ('d', cnt['d'] // c.npiece); cnt['d'] += 1
            else:
                tg = ('a', cnt['a'] // c.NTB); cnt['a'] += 1
            return tg
        for ins in c.pro_order: seq.append(tag(ins))
        state = {'done': 0}
        def check(n, needs):
            state['done'] = max(state['done'], len(seq) - n)
            for nd in needs:
                if nd not in seq: return False
                last = max(j for j, tg in enumerate(seq) if tg == nd)
                if last >= state['done']: return False
            return True
        if not check(n0, [('d', 0)]): return False
        for st in range(2 * steps):
            T, ks = divmod(st, c.KT)
            n = vm_after_act(st % steps)
            needs = [('a', st)]
            if ks == c.KT - 1:
                n = min(n, vm_after_dma(st % steps + steps))
                needs.append(('d', T + 1))
            if not check(min(n, 63), needs): return False
            for g in fills[st % steps]:
                for ins in g:
                    if ins.startswith('buffer_'): seq.append(tag(ins))
        return True
    while npro_after > 0 and not simulate(npro_after): npro_after -= 1
    assert simulate(npro_after), c.name
    lab = f'{c.name}_loop'
    A(f's_mov_b32 s{c.s_cnt}, 0')
    A(f's_waitcnt vmcnt({min(npro_after,63)})')
    A('s_barrier')
    for ins in tr_reads(c, 0, 0, 0): A(ins)
    A.label(lab)
    for st in range(steps):
        T, ks = divmod(st, c.KT)
        n = vm_after_act(st)
        bar = ks == c.KT - 1
        if bar: n = min(n, vm_after_dma(st))
        A(f's_waitcnt vmcnt({min(n,63)}) lgkmcnt(0)')
        if bar: A('s_barrier')
        slot = st % c.R
        for g, (fb, tb) in enumerate(c.mfma_order(st)):
            A(f'{c.mfma()} {c.accreg(fb,tb)}, {c.wreg(st%2, fb)}, {c.actreg(slot, tb)}, {c.accreg(fb,tb)}')
            for ins in fills[st][g]:
                ab = getattr(c, 'ablate', '')
                if 'a' in ab and ins.startswith('buffer') and not ins.endswith('lds'): continue
                if 'd' in ab and ins.endswith('lds'): continue
                if 't' in ab and ins.startswith('ds_read'): continue
                A(ins)
    A(f's_add_u32 s{c.s_cnt}, s{c.s_cnt}, 1')
    A(f's_cmp_lt_u32 s{c.s_cnt}, {niter}')
    A(f's_cbranch_scc1 {lab}')
```

```python
import re

TRANS = ('v_exp_f32', 'v_log_f32', 'v_rcp_f32', 'v_rsq_f32', 'v_sqrt_f32', 'v_sin_f32', 'v_cos_f32', 'v_rcp_iflag_f32')
REG = re.compile(r'\b([vas])(\d+)\b|\b([vas])\[(\d+):(\d+)\]|\b(vcc|exec|m0|scc)\b')

def regs(tok):
    out = set()
    for m in REG.finditer(tok):
        if m.group(1): out.add((m.group(1), int(m.group(2))))
        elif m.group(3):
            for i in range(int(m.group(4)), int(m.group(5)) + 1): out.add((m.group(3), i))
        else: out.add((m.group(6), 0))
    return out

class I:
    __slots__ = ('text', 'op', 'dst', 'src', 'srcC', 'srcAB', 'kind', 'passes', 'ws', 'dpp', 'data', 'lds')
    def __init__(self, text):
        self.text = text
        t = text.split(';')[0].strip()
        parts = t.split(None, 1)
        self.op = op = parts[0]
        rest = parts[1] if len(parts) > 1 else ''
        ops = [o.strip() for o in rest.split(',')] if rest else []
        self.dst = set(); self.src = set(); self.srcC = set(); self.srcAB = set(); self.data = set()
        self.passes = 0; self.ws = 1; self.dpp = False; self.lds = False
        if op == 's_nop':
            self.kind = 'nop'; self.ws = int(rest, 0) + 1
        elif op.startswith('v_mfma'):
            self.kind = 'mfma'; self.passes = 8 if '32x32x16' in op else 4
            self.dst = regs(ops[0]); self.srcAB = regs(ops[1]) | regs(ops[2]); self.srcC = regs(ops[3])
            self.src = self.srcAB | self.srcC
        elif op.startswith('v_'):
            self.kind = 'valu'
            self.dpp = ('row_' in t or 'quad_perm' in t or '_dpp' in op)
            if op.startswith('v_cmp'):
                self.dst = regs(ops[0]); self.src = set().union(*[regs(o) for o in ops[1:]])
            elif op.startswith('v_permlane') and 'swap' in op:
                self.dst = regs(ops[0]) | regs(ops[1]); self.src = set(self.dst)
            elif op.startswith('v_readfirstlane') or op.startswith('v_readlane'):
                self.dst = regs(ops[0]); self.src = set().union(*[regs(o) for o in ops[1:]])
            elif op.startswith(('v_add_co', 'v_sub_co', 'v_addc_co', 'v_subb_co', 'v_div_scale')):
                self.dst = regs(ops[0]) | regs(ops[1]); self.src = set().union(*[regs(o) for o in ops[2:]])
            else:
                self.dst = regs(ops[0]); self.src = set().union(*[regs(o) for o in ops[1:]]) if len(ops) > 1 else set()
                if op.startswith(('v_fmac', 'v_dot2c', 'v_pk_fmac')): self.src |= self.dst
                if op.startswith('v_cndmask') and len(ops) == 3: self.src.add(('vcc', 0))
        elif op.startswith(('buffer_', 'global_', 'ds_')):
            self.kind = 'mem'
            allr = [regs(o) for o in ops]
            self.lds = t.endswith(' lds')
            if op.startswith(('buffer_load', 'global_load')) and not self.lds:
                self.dst = allr[0]; self.src = set().union(*allr[1:])
            elif op.startswith('ds_read') or op.startswith(('ds_bpermute', 'ds_swizzle', 'ds_permute')):
                self.dst = allr[0]; self.src = set().union(*allr[1:])
            elif op.startswith(('buffer_store', 'buffer_atomic')):
                self.data = allr[0]; self.src = set().union(*allr) if allr else set()
                if op.startswith('buffer_atomic') and ' sc0' in t: self.dst = allr[0]
            elif op.startswith(('global_store', 'global_atomic')):
                self.data = allr[1]; self.src = set().union(*allr)
            else:
                self.src = set().union(*allr) if allr else set()
            if self.lds: self.src.add(('m0', 0))
        elif op.startswith('s_'):
            self.kind = 'salu'
            if op.startswith(('s_cmp', 's_cbranch', 's_branch', 's_waitcnt', 's_barrier', 's_endpgm', 's_setprio', 's_sleep', 's_bitcmp')):
                self.src = set().union(*[regs(o) for o in ops]) if ops else set()
            else:
                self.dst = regs(ops[0]) if ops else set(); self.src = set().union(*[regs(o) for o in ops[1:]]) if len(ops) > 1 else set()
                if 'saveexec' in op: self.dst.add(('exec', 0))
        else:
            self.kind = 'other'

def vec(rs): return {r for r in rs if r[0] in 'va'}
def sca(rs): return {r for r in rs if r[0] == 's' or r[0] == 'vcc'}

def need(p, c):
    n = 0
    if p.kind == 'valu':
        pv = vec(p.dst); ps = sca(p.dst)
        if c.kind == 'mfma' and pv & c.src: n = max(n, 2)
        if c.kind == 'valu':
            if c.dpp and pv & vec(c.src): n = max(n, 2)
            if c.op.startswith('v_permlane') and pv & vec(c.src): n = max(n, 2)
            if c.op.startswith(('v_readlane', 'v_readfirstlane')) and pv & vec(c.src): n = max(n, 1)
            if p.op.startswith(TRANS) and not c.op.startswith(TRANS) and pv & (vec(c.src)): n = max(n, 1)
            if ps & sca(c.src):
                n = max(n, 4 if c.op.startswith(('v_readlane', 'v_writelane')) else 2)
        if c.kind == 'mem' and ps & sca(c.src): n = max(n, 5)
    if p.kind == 'mfma':
        P = p.passes
        if c.kind == 'mfma':
            if p.dst & c.srcAB: n = max(n, 8 if P == 4 else 12)
            if p.dst & c.srcC and p.dst != c.srcC: n = max(n, 6 if P == 4 else 10)
            if p.dst & c.srcC and p.dst == c.srcC and c.passes != P: n = max(n, 6 if P == 4 else 10)
        elif c.kind in ('valu', 'mem'):
            if p.dst & (vec(c.src) | vec(c.dst)): n = max(n, 8 if P == 4 else 12)
            if c.kind == 'valu' and p.srcC & vec(c.dst): n = max(n, 3 if P == 4 else 7)
    if p.kind == 'salu' and ('m0', 0) in p.dst and c.kind == 'mem' and c.lds: n = max(n, 1)
    if p.kind == 'mem' and p.data and ('x4' in p.op or 'x3' in p.op or 'b128' in p.op and False):
        if c.kind == 'valu' and p.data & vec(c.dst): n = max(n, 2)
        elif c.kind in ('mem', 'mfma') and p.data & vec(c.dst): n = max(n, 1)
    return n

WINDOW = 14

def fix(lines, verbose=False):
    out = []
    hist = []
    ninserted = 0
    def required(h, c):
        req = 0; dist = 0
        for p in reversed(h):
            n = need(p, c)
            if n > dist: req = max(req, n - dist)
            dist += p.ws
            if dist >= WINDOW: break
        return req
    inrept = False
    for l in lines:
        if isinstance(l, tuple) or l.startswith(';') or not l:
            out.append(l); continue
        if l.startswith('.'):
            out.append(l)
            if l.startswith(('.p2align', '.globl', '.section', '.text')): hist = []
            continue
        if l.endswith(':'):
            out.append(l); continue
        c = I(l)
        r = required(hist, c)
        if r > 0:
            ninserted += 1
            if verbose: print('nop', r, 'before', l)
            while r > 0:
                k = min(r, 16)
                out.append(f's_nop {k-1}'); hist.append(I(f's_nop {k-1}')); r -= k
        out.append(l); hist.append(c)
        if c.op in ('s_endpgm', 's_branch'): hist = []
        if len(hist) > 40: hist = hist[-40:]
    labels = {}
    ins = []
    for l in out:
        if isinstance(l, tuple) or l.startswith(';') or not l: continue
        if l.startswith('.'):
            continue
        if l.endswith(':'):
            labels[l[:-1]] = len(ins); continue
        ins.append(I(l))
    for j, c in enumerate(ins):
        if c.op.startswith(('s_cbranch', 's_branch')):
            tgt = c.text.split()[1]
            if tgt not in labels: continue
            h = ins[max(0, j - 30): j + 1]
            k = labels[tgt]; dist = 0
            hh = list(h)
            while k < len(ins) and dist < WINDOW:
                r = required(hh, ins[k])
                if r > 0:
                    raise RuntimeError(f'hazard across branch {c.text} -> {ins[k].text}: need {r} more wait states')
                hh.append(ins[k]); dist += ins[k].ws
                if ins[k].op in ('s_endpgm', 's_branch'): break
                k += 1
    return out, ninserted
```

```python
from common import *
from gemmlib import *
import common

LDS_K = 65536
LDS_V = 65536 + 32768
V_L16 = 16
V_L = 20
V_NEGM = 24
V_Q = 64
V_S = [128, 160]
V_P = [192, 208]
V_KA, V_VA = 17, 18
A_O = 0
A_F = 128
S_KVOFF = 50
S_IT = 51
S_T0, S_T1 = 52, 53
S_WK = 54
MFMA = 'v_mfma_f32_16x16x32_bf16'

def qreg(tb, ks): b = V_Q + (tb*4+ks)*4; return v(b, 4)
def sreg(buf, kb, tb): return V_S[buf] + (kb*4+tb)*4
def preg(buf, tb): return V_P[buf] + tb*4
def oreg(db, tb): return A_O + (db*4+tb)*4
def freg(f): return a(A_F + (f % 8)*4, 4)

def kv_dma(which, s_tile_expr_reg, stage_reg):
    return [f's_mov_b32 m0, s{stage_reg}', 's_nop 0',
            f'buffer_load_dwordx4 v{V_L16}, s[8:11], s{s_tile_expr_reg} offen lds',
            f'buffer_load_dwordx4 v{V_L16}, s[8:11], s{s_tile_expr_reg} offen offset:1024 lds']

def emit_kv_dma_static(A, which, tile):
    base = LDS_K if which == 'k' else LDS_V
    A(f's_add_u32 s{S_T0}, s{S_KVOFF}, {tile*16384 + (8192 if which == "v" else 0)}')
    A(f's_add_u32 s{S_T1}, s{S_WK}, {base + (tile % 4)*8192}')
    for i in kv_dma(which, S_T0, S_T1): A(i)

def frag_read(f, qk):
    if f < 8: return f'ds_read_b128 {freg(f)}, v{V_KA} offset:{f*1024}'
    return f'ds_read_b128 {freg(f)}, v{V_VA} offset:{(f-8)*1024}'

def softmax_ops(buf):
    ops = []
    for tb in range(4):
        rs = [sreg(buf, kb, tb) + r for kb in range(2) for r in range(4)]
        pend = None
        for j, r in enumerate(rs):
            ops.append((f'v_exp_f32 v{r}, v{r}', 2))
            if pend is not None: ops.append((f'v_add_f32 v{V_L+tb}, v{V_L+tb}, v{pend}', 1))
            pend = r
        ops.append(('DEFER', [(f'v_add_f32 v{V_L+tb}, v{V_L+tb}, v{pend}', 1)] +
                    [(f'v_cvt_pk_bf16_f32 v{preg(buf, tb)+q}, v{rs[2*q]}, v{rs[2*q+1]}', 1) for q in range(4)]))
    out = []; hold = []
    for o in ops:
        if o[0] == 'DEFER': hold = o[1]; continue
        out.append(o)
        if hold and o[0].startswith('v_exp'):
            out += hold; hold = []
    if hold:
        out.append(('s_nop 0', 1)); out += hold
    return out

def emit_iter(A, par, do_qk, do_sm, do_pv, dma, last_reads=True, first_reads_done=True, extra=None):
    groups = []
    if do_qk:
        for kb in range(2):
            for ks in range(4):
                g = []
                tbs = range(4) if ks % 2 == 0 else range(3, -1, -1)
                for tb in tbs:
                    d = v(sreg(1-par, kb, tb), 4)
                    c = v(V_NEGM + tb*4, 4) if ks == 0 else d
                    g.append(f'{MFMA} {d}, {freg(kb*4+ks)}, {qreg(tb, ks)}, {c}')
                groups.append((kb*4+ks, g))
    if do_pv:
        for db in range(8):
            g = []
            tbs = range(4) if db % 2 == 0 else range(3, -1, -1)
            for tb in tbs:
                o = a(oreg(db, tb), 4)
                g.append(f'{MFMA} {o}, {freg(8+db)}, {v(preg(1-par, tb), 4)}, {o}')
            groups.append((8+db, g))
    sm = softmax_ops(par) if do_sm else []
    if extra: sm = sm + extra
    nm = sum(len(g) for _, g in groups)
    totw = sum(w for _, w in sm)
    order = [f for f, _ in groups]
    nxt = [0, 1, 2] if last_reads else []
    pre = 3
    if not first_reads_done:
        for f in order[:pre]: A(frag_read(f, do_qk))
    issued = pre
    smi = 0; cw = 0.0; mi = 0
    barrier_done = False
    for gi, (f, g) in enumerate(groups):
        nout = min(issued, len(order) + len(nxt)) - gi - 1
        A(f's_waitcnt lgkmcnt({max(nout,0)})')
        for j, m in enumerate(g):
            A(m); mi += 1
            if j == 0:
                if issued < len(order):
                    A(frag_read(order[issued], do_qk)); issued += 1
                elif issued - len(order) < len(nxt):
                    if not barrier_done:
                        barrier_done = True
                        for i in dma['pre']: A(i)
                    A(f'ds_read_b128 {freg(nxt[issued-len(order)])}, v{V_KA} offset:{nxt[issued-len(order)]*1024}'); issued += 1
                    if issued - len(order) == 1:
                        for i in dma['post']: A(i)
            target = totw * mi / nm
            while smi < len(sm) and cw + sm[smi][1] * 0.5 <= target:
                A(sm[smi][0]); cw += sm[smi][1]; smi += 1
    while smi < len(sm):
        A(sm[smi][0]); smi += 1

def ring_step():
    pre = [f's_waitcnt vmcnt(8) lgkmcnt(0)', 's_barrier',
           f's_add_u32 s{S_T0}, s{S_IT}, 2', f's_and_b32 s{S_T0}, s{S_T0}, 3', f's_lshl_b32 s{S_T0}, s{S_T0}, 13',
           f's_add_u32 s{S_T0}, s{S_T0}, {LDS_K}', f'v_add_u32 v{V_KA}, s{S_T0}, v{V_L16}']
    post = [
           f's_and_b32 s{S_T0}, s{S_IT}, 3', f's_lshl_b32 s{S_T0}, s{S_T0}, 13', f's_add_u32 s{S_T0}, s{S_T0}, {LDS_V}',
           f'v_add_u32 v{V_VA}, s{S_T0}, v{V_L16}',
           f's_add_u32 s{S_T0}, s{S_IT}, 5', f's_lshl_b32 s{S_T0}, s{S_T0}, 14', f's_add_u32 s{S_T0}, s{S_T0}, s{S_KVOFF}',
           f's_add_u32 s{S_T1}, s{S_IT}, 1', f's_and_b32 s{S_T1}, s{S_T1}, 3', f's_lshl_b32 s{S_T1}, s{S_T1}, 13',
           f's_add_u32 s{S_T1}, s{S_T1}, s{S_WK}', f's_add_u32 m0, s{S_T1}, {LDS_K}',
           f's_add_u32 s{S_T1}, s{S_IT}, 3',
           f'buffer_load_dwordx4 v{V_L16}, s[8:11], s{S_T0} offen lds',
           f'buffer_load_dwordx4 v{V_L16}, s[8:11], s{S_T0} offen offset:1024 lds',
           f's_and_b32 s{S_T1}, s{S_T1}, 3', f's_lshl_b32 s{S_T1}, s{S_T1}, 13', f's_add_u32 s{S_T1}, s{S_T1}, s{S_WK}',
           f's_add_u32 m0, s{S_T1}, {LDS_V}', f's_sub_u32 s{S_T0}, s{S_T0}, {2*16384 - 8192}',
           f'buffer_load_dwordx4 v{V_L16}, s[8:11], s{S_T0} offen lds',
           f'buffer_load_dwordx4 v{V_L16}, s[8:11], s{S_T0} offen offset:1024 lds',
           f's_add_u32 s{S_IT}, s{S_IT}, 1']
    return dict(pre=pre, post=post)

def k_qattn(A, name):
    c = GemmCfg(name='qp', shape=16, NTB=4, R=4, wstride=8192, K=1024, act=0, act_kind='a', wf=64, wf_kind='a', acc=128,
                v_tr=4, v_act=12, v_dma=2, layout=1, order='sf', s_w=12, s_a=8)
    A(kernel_header(name))
    A(f's_cmp_ge_u32 s2, 256\ns_cbranch_scc1 {name}_end')
    stamp_begin(A)
    load_ptr(A, 4, 'ws'); load_ptr(A, 36, 'wq')
    lane_wave(A)
    A('s_and_b32 s31, s2, 1\ns_lshl_b32 s31, s31, 2\ns_bfe_u32 s33, s2, 0x20003\ns_add_u32 s31, s31, s33')
    A('s_bfe_u32 s34, s2, 0x20001\ns_lshl_b32 s32, s34, 3\ns_lshr_b32 s33, s2, 5\ns_add_u32 s32, s32, s33')
    A('s_waitcnt lgkmcnt(0)')
    srd(A, 8, 4, WS_SIZE)
    srd(A, 12, 36, 1024*8192)
    A('s_lshl_b32 s33, s32, 8')
    A('s_lshl_b32 s35, s31, 4\ns_lshl_b32 s38, s30, 2\ns_add_u32 s35, s35, s38')
    emit_addr_setup(A, c, 'v1', 's30', 's33', 's35')
    assert WS_H == 0
    nafter, per = emit_prologue_loads(A, c)
    A(f'v_lshlrev_b32 v{V_L16}, 4, v1')
    A(f's_lshl_b32 s{S_KVOFF}, s34, 18\ns_add_u32 s{S_KVOFF}, s{S_KVOFF}, {WS_KV}')
    A(f's_lshl_b32 s{S_WK}, s30, 11')
    A(f's_add_u32 s{S_KVOFF}, s{S_KVOFF}, s{S_WK}')
    n0 = len(A.lines)
    for which, tile in (('k', 0), ('k', 1), ('v', 0), ('k', 2), ('v', 1), ('k', 3)):
        emit_kv_dma_static(A, which, tile)
    c.pro_order += [l for l in A.lines[n0:] if l.startswith('buffer_')]
    A(f's_add_u32 m0, s{c.s_m0}, {(c.NS-1)*c.stage_bytes}')
    for r in range(128): A(f'v_mov_b32 v{c.acc+r}, 0')
    stamp(A, 1)
    emit_loop(A, c, nafter + 12)
    stamp(A, 2)
    for tb in range(4):
        for ks in range(4):
            b0, b1 = c.accbase(2*ks, tb), c.accbase(2*ks+1, tb)
            q = V_Q + (tb*4+ks)*4
            A(f'v_cvt_pk_bf16_f32 v{q}, v{b0}, v{b0+1}\nv_cvt_pk_bf16_f32 v{q+1}, v{b0+2}, v{b0+3}')
            A(f'v_cvt_pk_bf16_f32 v{q+2}, v{b1}, v{b1+1}\nv_cvt_pk_bf16_f32 v{q+3}, v{b1+2}, v{b1+3}')
    A('s_waitcnt vmcnt(0)')
    A('s_barrier')
    for r in range(128): A(f'v_accvgpr_write_b32 a{A_O+r}, 0')
    for tb in range(4): A(f'v_mov_b32 v{V_L+tb}, 0')
    A(f'v_add_u32 v{V_KA}, {LDS_K}, v{V_L16}')
    A(f'v_add_u32 v{V_VA}, {LDS_V}, v{V_L16}')
    for tb in range(4):
        for r in range(4): A(f'v_mov_b32 v{V_NEGM+tb*4+r}, 0')
    A(f's_mov_b32 s{S_IT}, -1')
    emit_iter(A, 1, True, False, False, ring_step(), first_reads_done=False)
    for tb in range(4):
        r0, r1 = sreg(0, 0, tb), sreg(0, 1, tb)
        m = 40 + tb
        A(f'v_max3_f32 v{m}, v{r0}, v{r0+1}, v{r0+2}')
        A(f'v_max3_f32 v{m}, v{m}, v{r0+3}, v{r1}')
        A(f'v_max3_f32 v{m}, v{m}, v{r1+1}, v{r1+2}')
        A(f'v_max_f32 v{m}, v{m}, v{r1+3}')
    xsum_rows(A, [f'v{40+tb}' for tb in range(4)], [f'v{44+tb}' for tb in range(4)], op='v_max_f32')
    for tb in range(4):
        for r in range(4): A(f'v_sub_f32 v{V_NEGM+tb*4+r}, 0, v{40+tb}')
        for kb in range(2):
            for r in range(4): A(f'v_sub_f32 v{sreg(0,kb,tb)+r}, v{sreg(0,kb,tb)+r}, v{40+tb}')
    stamp(A, 3)
    emit_iter(A, 0, True, True, False, ring_step())
    lab = name + '_att'
    A.label(lab)
    emit_iter(A, 1, True, True, True, ring_step())
    emit_iter(A, 0, True, True, True, ring_step())
    A(f's_cmp_lt_u32 s{S_IT}, 15\ns_cbranch_scc1 {lab}')
    A('s_waitcnt lgkmcnt(0)')
    emit_iter(A, 1, False, True, True, dict(pre=[], post=[]), last_reads=False, first_reads_done=False)
    A('s_waitcnt vmcnt(8)')
    A('s_barrier')
    A(f's_mov_b32 s{S_T0}, {LDS_V + 3*8192}')
    A(f'v_add_u32 v{V_VA}, s{S_T0}, v{V_L16}')
    emit_iter(A, 0, False, False, True, dict(pre=[], post=[]), last_reads=False, first_reads_done=False)
    stamp(A, 4)
    xsum_rows(A, [f'v{V_L+tb}' for tb in range(4)], [f'v{44+tb}' for tb in range(4)])
    A(f's_mov_b32 s{S_T0}, {hexf(2.0**100)}')
    A(f'v_add_f32 v41, v{V_L}, v{V_L+1}\nv_add_f32 v42, v{V_L+2}, v{V_L+3}\nv_add_f32 v41, v41, v42')
    A(f'v_cmp_nle_f32 vcc, v41, s{S_T0}')
    A('s_nop 4')
    A(f's_cbranch_vccnz {name}_slow')
    A.label(name + '_norm')
    for tb in range(4): A(f'v_rcp_f32 v{V_L+tb}, v{V_L+tb}')
    A(f's_lshl_b32 s{S_T0}, s35, 17')
    A(f's_lshl_b32 s{S_T1}, s32, 12')
    A(f's_add_u32 s{S_T0}, s{S_T0}, s{S_T1}\ns_add_u32 s{S_T0}, s{S_T0}, {WS_O}')
    cnt = 0
    for tb in range(4):
        for j in range(4):
            t = 128 + 8*(cnt % 4); d = 160 + 4*(cnt % 4); cnt += 1
            for h in range(2):
                for r in range(4): A(f'v_accvgpr_read_b32 v{t+4*h+r}, a{oreg(2*j+h, tb)+r}')
            for q in range(8): A(f'v_mul_f32 v{t+q}, v{t+q}, v{V_L+tb}')
            for q in range(4): A(f'v_cvt_pk_bf16_f32 v{d+q}, v{t+2*q}, v{t+2*q+1}')
            A(f'buffer_store_dwordx4 v[{d}:{d+3}], v{V_L16}, s[8:11], s{S_T0} offen offset:{j*1024}')
        if tb < 3: A(f's_add_u32 s{S_T0}, s{S_T0}, {1 << 17}')
    A(f's_branch {name}_fin')
    A.label(name + '_slow')
    emit_slow(A, name)
    A(f's_branch {name}_norm')
    A.label(name + '_fin')
    stamp(A, 5); stamp_flush(A, 2, 6)
    A.label(name + '_end')
    A('s_endpgm')
    return (name, 256, 256, 102)

def emit_slow(A, name):
    A(f's_sub_u32 s{S_KVOFF}, s{S_KVOFF}, s{S_WK}')
    A('s_waitcnt vmcnt(0) lgkmcnt(0)')
    def load_frags(first, n, off):
        for f in range(n):
            A(f's_add_u32 s{S_T1}, s{S_T0}, {off + (f//4)*4096}')
            A(f'buffer_load_dwordx4 {a(A_F + f*4, 4)}, v{V_L16}, s[8:11], s{S_T1} offen offset:{(f%4)*1024}')
        A('s_waitcnt vmcnt(0)')
    def qk(cinit):
        for kb in range(2):
            for ks in range(4):
                for tb in range(4):
                    d = v(sreg(0, kb, tb), 4)
                    cc = cinit(tb) if ks == 0 else d
                    A(f'{MFMA} {d}, {a(A_F + (kb*4+ks)*4, 4)}, {qreg(tb, ks)}, {cc}')
        A('s_nop 7')
    for tb in range(4): A(f'v_mov_b32 v{40+tb}, 0xff800000')
    A(f's_mov_b32 s{S_IT}, 0')
    A.label(name + '_slow1')
    A(f's_lshl_b32 s{S_T0}, s{S_IT}, 14\ns_add_u32 s{S_T0}, s{S_T0}, s{S_KVOFF}')
    load_frags(0, 8, 0)
    qk(lambda tb: '0')
    for tb in range(4):
        for kb in range(2):
            r0 = sreg(0, kb, tb)
            A(f'v_max3_f32 v{40+tb}, v{40+tb}, v{r0}, v{r0+1}')
            A(f'v_max3_f32 v{40+tb}, v{40+tb}, v{r0+2}, v{r0+3}')
    A(f's_add_u32 s{S_IT}, s{S_IT}, 1\ns_cmp_lt_u32 s{S_IT}, 16\ns_cbranch_scc1 {name}_slow1')
    xsum_rows(A, [f'v{40+tb}' for tb in range(4)], [f'v{44+tb}' for tb in range(4)], op='v_max_f32')
    for tb in range(4):
        for r in range(4): A(f'v_sub_f32 v{V_NEGM+tb*4+r}, 0, v{40+tb}')
        A(f'v_mov_b32 v{V_L+tb}, 0')
    for r in range(128): A(f'v_accvgpr_write_b32 a{A_O+r}, 0')
    A(f's_mov_b32 s{S_IT}, 0')
    A.label(name + '_slow2')
    A(f's_lshl_b32 s{S_T0}, s{S_IT}, 14\ns_add_u32 s{S_T0}, s{S_T0}, s{S_KVOFF}')
    load_frags(0, 8, 0)
    qk(lambda tb: v(V_NEGM + tb*4, 4))
    for ins, w in softmax_ops(0): A(ins)
    load_frags(0, 8, 8192)
    for db in range(8):
        for tb in range(4):
            o = a(oreg(db, tb), 4)
            A(f'{MFMA} {o}, {a(A_F + db*4, 4)}, {v(preg(0, tb), 4)}, {o}')
    A(f's_add_u32 s{S_IT}, s{S_IT}, 1\ns_cmp_lt_u32 s{S_IT}, 16\ns_cbranch_scc1 {name}_slow2')
    A('s_nop 7')
    xsum_rows(A, [f'v{V_L+tb}' for tb in range(4)], [f'v{44+tb}' for tb in range(4)])
```

```python
from common import *
from gemmlib import *
import common

def typeB_cfg(name, K, act_base):
    return GemmCfg(name=name, shape=16, FEAT=64, NTB=2, BK=128, R=8, K=K, wstride=2048, act=0, act_kind='a', wf=64, wf_kind='a',
                   acc=128, v_tr=4, v_act=12, v_dma=2, layout=1, order='sf', s_w=12, s_a=8, act_base=act_base)

def mapB(A):
    A('s_and_b32 s31, s2, 3\ns_lshl_b32 s31, s31, 2\ns_bfe_u32 s33, s2, 0x20003\ns_add_u32 s31, s31, s33')
    A('s_bfe_u32 s32, s2, 0x10002\ns_lshl_b32 s32, s32, 3\ns_lshr_b32 s33, s2, 5\ns_add_u32 s32, s32, s33')

def load_stats(A, s_tb16, ntb, vbase, vaddr):
    A(f'v_and_b32 {vaddr}, 15, v1')
    A(f'v_lshlrev_b32 {vaddr}, 7, {vaddr}')
    A(f'v_lshrrev_b32 v47, 4, v1')
    A(f'v_lshl_add_u32 {vaddr}, v47, 5, {vaddr}')
    A(f's_lshl_b32 s40, {s_tb16}, 11')
    A(f's_add_u32 s40, s40, {WS_ST}')
    for tb in range(ntb):
        A(f'buffer_load_dwordx4 v[{vbase+8*tb}:{vbase+8*tb+3}], {vaddr}, s[8:11], s40 offen offset:{tb*2048 % 4096}')
        A(f'buffer_load_dwordx4 v[{vbase+8*tb+4}:{vbase+8*tb+7}], {vaddr}, s[8:11], s40 offen offset:{tb*2048 % 4096 + 16}')
        if tb % 2 == 1 and tb + 1 < ntb: A('s_add_u32 s40, s40, 4096')

def finish_stats(A, ntb, vbase, vmean, vsd, tmp):
    for tb in range(ntb):
        b = vbase + 8*tb
        A(f'v_add_f32 v{vmean+tb}, v{b}, v{b+2}\nv_add_f32 v{vsd+tb}, v{b+4}, v{b+6}\nv_add_f32 v{vmean+tb}, v{vmean+tb}, v{vsd+tb}')
    xsum_rows(A, [f'v{vmean+tb}' for tb in range(ntb)], [f'v{tmp+tb}' for tb in range(ntb)])
    for tb in range(ntb):
        b = vbase + 8*tb
        A(f'v_mul_f32 v{vmean+tb}, {hexf(1/16)}, v{vmean+tb}')
        for j in range(4): A(f'v_sub_f32 v{b+2*j}, v{b+2*j}, v{vmean+tb}')
        for j in range(4): A(f'v_mul_f32 v{b+2*j}, v{b+2*j}, v{b+2*j}')
        A(f'v_add_f32 v{b}, v{b}, v{b+2}\nv_add_f32 v{b+4}, v{b+4}, v{b+6}\nv_add_f32 v{b}, v{b}, v{b+4}')
        A(f'v_add_f32 v{b+1}, v{b+1}, v{b+3}\nv_add_f32 v{b+5}, v{b+5}, v{b+7}\nv_add_f32 v{b+1}, v{b+1}, v{b+5}')
        A(f'v_mov_b32 v{vsd+tb}, v{b+1}')
        A(f'v_fmac_f32 v{vsd+tb}, {hexf(64.0)}, v{b}')
    xsum_rows(A, [f'v{vsd+tb}' for tb in range(ntb)], [f'v{tmp+tb}' for tb in range(ntb)])
    for tb in range(ntb):
        A(f'v_mov_b32 v{tmp+tb}, {hexf(1e-5)}')
        A(f'v_fmac_f32 v{tmp+tb}, {hexf(1/1024)}, v{vsd+tb}')
        A(f'v_sqrt_f32 v{vsd+tb}, v{tmp+tb}')

def load_featvec(A, sect_off, s_featbyte4, nfb, vbase, vaddr):
    A(f's_add_u32 s40, {s_featbyte4}, {sect_off}')
    for fb in range(nfb):
        A(f'buffer_load_dwordx4 v[{vbase+4*fb}:{vbase+4*fb+3}], {vaddr}, s[8:11], s40 offen offset:{fb*64}')

def gemmB_common(A, name, c, wname, wbytes, launch_idx):
    A(kernel_header(name))
    A(f's_cmp_ge_u32 s2, 256\ns_cbranch_scc1 {name}_end')
    stamp_begin(A)
    load_ptr(A, 4, 'ws'); load_ptr(A, 36, wname); load_ptr(A, 38, 'out')
    lane_wave(A)
    mapB(A)
    A('s_waitcnt lgkmcnt(0)')
    srd(A, 8, 4, WS_SIZE)
    srd(A, 12, 36, wbytes)
    A('s_lshl_b32 s33, s32, 7')
    A('s_lshl_b32 s35, s31, 3\ns_lshl_b32 s41, s30, 1\ns_add_u32 s35, s35, s41')
    A('s_lshl_b32 s34, s32, 8')
    A('v_lshrrev_b32 v17, 4, v1\nv_lshlrev_b32 v17, 4, v17')
    A('v_lshlrev_b32 v16, 4, v1')

def k_wo(A, name):
    c = typeB_cfg('wo', 4096, WS_O)
    gemmB_common(A, name, c, 'wo', 4096*2048, 3)
    A('s_lshl_b32 s42, s35, 15\ns_lshl_b32 s43, s32, 11\ns_add_u32 s42, s42, s43')
    A(f's_add_u32 s43, s42, {WS_XF}')
    for tb in range(2):
        for j in range(2):
            A(f'buffer_load_dwordx4 v[{64+8*tb+4*j}:{67+8*tb+4*j}], v16, s[8:11], s43 offen offset:{j*1024}')
        if tb == 0: A('s_add_u32 s43, s43, 32768')
    load_featvec(A, WS_MOD + 2*4096, 's34', 4, 80, 'v17')
    load_featvec(A, WS_MOD + 4*4096, 's34', 4, 96, 'v17')
    emit_addr_setup(A, c, 'v1', 's30', 's33', 's35')
    nafter, per = emit_prologue_loads(A, c)
    for r in range(32): A(f'v_mov_b32 v{c.acc+r}, 0')
    stamp(A, 1)
    emit_loop(A, c, nafter)
    stamp(A, 2)
    A('s_nop 7')
    for tb in range(2):
        X = 160
        for fb in range(4):
            xr = 64 + 8*tb + 4*(fb // 2) + 2*(fb % 2)
            for h in range(2):
                unpack_lo(A, f'v{X+4*fb+2*h}', f'v{xr+h}'); unpack_hi(A, f'v{X+4*fb+2*h+1}', f'v{xr+h}')
            for r in range(4):
                A(f'v_fmac_f32 v{X+4*fb+r}, v{80+4*fb+r}, v{c.accbase(fb, tb)+r}')
        P = 176
        for q in range(8): A(f'v_cvt_pk_bf16_f32 v{P+q}, v{X+2*q}, v{X+2*q+1}')
        for q in range(8):
            unpack_lo(A, f'v{X+2*q}', f'v{P+q}'); unpack_hi(A, f'v{X+2*q+1}', f'v{P+q}')
        A(f's_add_u32 s43, s42, {WS_X1 + tb*32768}')
        for j in range(2):
            A(f'buffer_store_dwordx4 v[{P+4*j}:{P+4*j+3}], v16, s[8:11], s43 offen offset:{j*1024}')
        Y = 184
        for q in range(16): A(f'v_mul_f32 v{200+q}, v{X+q}, v{96+q}')
        for q in range(8): A(f'v_cvt_pk_bf16_f32 v{Y+q}, v{200+2*q}, v{200+2*q+1}')
        A(f's_add_u32 s43, s42, {WS_Y + tb*32768}')
        for j in range(2):
            A(f'buffer_store_dwordx4 v[{Y+4*j}:{Y+4*j+3}], v16, s[8:11], s43 offen offset:{j*1024}')
        S = 20 + 2*tb
        A(f'v_add_f32 v{S}, v{X}, v{X+1}')
        for q in range(2, 16): A(f'v_add_f32 v{S}, v{S}, v{X+q}')
        xsum_rows(A, [f'v{S}'], ['v44'])
        A(f'v_mul_f32 v{S}, {hexf(1/64)}, v{S}')
        for q in range(16): A(f'v_sub_f32 v{X+q}, v{X+q}, v{S}')
        A(f'v_mul_f32 v{S+1}, v{X}, v{X}')
        for q in range(1, 16): A(f'v_fmac_f32 v{S+1}, v{X+q}, v{X+q}')
        xsum_rows(A, [f'v{S+1}'], ['v44'])
    A('v_lshlrev_b32 v45, 7, v1')
    A('s_lshl_b32 s40, s35, 11\ns_lshl_b32 s41, s32, 3\ns_add_u32 s40, s40, s41')
    A(f's_add_u32 s40, s40, {WS_ST}')
    A('v_cmp_gt_u32 vcc, 16, v1')
    A('s_and_saveexec_b64 s[44:45], vcc')
    A('buffer_store_dwordx2 v[20:21], v45, s[8:11], s40 offen')
    A('buffer_store_dwordx2 v[22:23], v45, s[8:11], s40 offen offset:2048')
    A('s_mov_b64 exec, s[44:45]')
    stamp(A, 5); stamp_flush(A, 3, 6)
    A.label(name + '_end')
    A('s_endpgm')
    return (name, 256, 128, 102)

def k_w2(A, name):
    c = typeB_cfg('w2', 3584, WS_H1)
    gemmB_common(A, name, c, 'w2', 3584*2048, 5)
    srd(A, 16, 38, 2048*2048)
    A('s_lshl_b32 s42, s35, 15\ns_lshl_b32 s43, s32, 11\ns_add_u32 s42, s42, s43')
    A(f's_add_u32 s43, s42, {WS_X1}')
    for tb in range(2):
        for j in range(2):
            A(f'buffer_load_dwordx4 v[{64+8*tb+4*j}:{67+8*tb+4*j}], v16, s[8:11], s43 offen offset:{j*1024}')
        if tb == 0: A('s_add_u32 s43, s43, 32768')
    load_featvec(A, WS_MOD + 5*4096, 's34', 4, 80, 'v17')
    load_stats(A, 's35', 2, 96, 'v46')
    emit_addr_setup(A, c, 'v1', 's30', 's33', 's35')
    nafter, per = emit_prologue_loads(A, c)
    for r in range(32): A(f'v_mov_b32 v{c.acc+r}, 0')
    stamp(A, 1)
    emit_loop(A, c, nafter)
    stamp(A, 2)
    finish_stats(A, 2, 96, 20, 22, 44)
    for tb in range(2): A(f'v_rcp_f32 v{22+tb}, v{22+tb}')
    A('v_and_b32 v24, 15, v1\nv_lshlrev_b32 v24, 11, v24')
    A('v_bfe_u32 v25, v1, 4, 1\nv_lshl_add_u32 v24, v25, 5, v24')
    A('v_lshrrev_b32 v25, 5, v1\nv_lshl_add_u32 v24, v25, 4, v24')
    A('s_lshl_b32 s43, s35, 15\ns_add_u32 s43, s43, s33')
    for tb in range(2):
        X = 160
        for fb in range(4):
            xr = 64 + 8*tb + 4*(fb // 2) + 2*(fb % 2)
            for r in range(4): A(f'v_mul_f32 v{c.accbase(fb,tb)+r}, v{c.accbase(fb,tb)+r}, v{22+tb}')
            for h in range(2):
                unpack_lo(A, f'v{X+4*fb+2*h}', f'v{xr+h}'); unpack_hi(A, f'v{X+4*fb+2*h+1}', f'v{xr+h}')
            for r in range(4):
                A(f'v_fmac_f32 v{X+4*fb+r}, v{80+4*fb+r}, v{c.accbase(fb, tb)+r}')
        P = 176 + 8*tb
        for q in range(8): A(f'v_cvt_pk_bf16_f32 v{P+q}, v{X+2*q}, v{X+2*q+1}')
        for j in range(2):
            A(f'v_permlane16_swap_b32 v{P+4*j}, v{P+4*j+2}')
            A(f'v_permlane16_swap_b32 v{P+4*j+1}, v{P+4*j+3}')
        for j in range(2):
            A(f'buffer_store_dwordx4 v[{P+4*j}:{P+4*j+3}], v24, s[16:19], s43 offen offset:{j*64}')
        if tb == 0: A('s_add_u32 s43, s43, 32768')
    stamp(A, 5); stamp_flush(A, 5, 6)
    A.label(name + '_end')
    A('s_endpgm')
    return (name, 256, 128, 102)

def k_w1(A, name):
    c = GemmCfg(name='w1', shape=16, NTB=4, R=4, wstride=7168, K=1024, act=0, act_kind='a', wf=64, wf_kind='a', acc=128,
                v_tr=4, v_act=12, v_dma=2, layout=1, order='sf', s_w=12, s_a=8, act_base=WS_Y)
    A(kernel_header(name))
    A(f's_cmp_ge_u32 s2, 224\ns_cbranch_scc1 {name}_end')
    stamp_begin(A)
    load_ptr(A, 4, 'ws'); load_ptr(A, 36, 'w1')
    lane_wave(A)
    A('s_and_b32 s31, s2, 1\ns_lshl_b32 s31, s31, 2\ns_bfe_u32 s33, s2, 0x20003\ns_add_u32 s31, s31, s33')
    A('s_bfe_u32 s32, s2, 0x20001\ns_mul_i32 s32, s32, 7\ns_lshr_b32 s33, s2, 5\ns_add_u32 s32, s32, s33')
    A('s_waitcnt lgkmcnt(0)')
    srd(A, 8, 4, WS_SIZE)
    srd(A, 12, 36, 1024*7168)
    A('s_lshl_b32 s33, s32, 8')
    A('s_lshl_b32 s35, s31, 4\ns_lshl_b32 s38, s30, 2\ns_add_u32 s35, s35, s38')
    A('s_lshl_b32 s34, s32, 9')
    A('v_lshrrev_b32 v17, 4, v1\nv_lshlrev_b32 v17, 4, v17')
    A('v_lshlrev_b32 v16, 4, v1')
    load_stats(A, 's35', 4, 64, 'v46')
    load_featvec(A, WS_U, 's34', 8, 96, 'v17')
    A(f's_add_u32 s40, s34, {WS_V}')
    VV = [48 + 4*fb if fb < 4 else 20 + 4*(fb-4) for fb in range(8)]
    for fb in range(8):
        A(f'buffer_load_dwordx4 v[{VV[fb]}:{VV[fb]+3}], v17, s[8:11], s40 offen offset:{fb*64}')
    emit_addr_setup(A, c, 'v1', 's30', 's33', 's35')
    nafter, per = emit_prologue_loads(A, c)
    A(f's_waitcnt vmcnt({len(c.pro_order)})')
    finish_stats(A, 4, 64, 36, 40, 44)
    for fb in range(8):
        for tb in range(4):
            for r in range(4):
                d = c.accbase(fb, tb) + r
                A(f'v_mul_f32 v{d}, v{VV[fb]+r}, v{40+tb}')
                A(f'v_fma_f32 v{d}, -v{36+tb}, v{96+4*fb+r}, v{d}')
    stamp(A, 1)
    emit_loop(A, c, nafter)
    stamp(A, 2)
    A('s_nop 7')
    A(f's_mul_i32 s42, s35, {112*1024}')
    A('s_lshl_b32 s43, s32, 12\ns_add_u32 s42, s42, s43')
    A(f's_add_u32 s42, s42, {WS_H1}')
    cnt = 0
    for tb in range(4):
        for j in range(4):
            d = 24 + 4*(cnt % 4); cnt += 1
            b0, b1 = c.accbase(2*j, tb), c.accbase(2*j+1, tb)
            A(f'v_cvt_pk_bf16_f32 v{d}, v{b0}, v{b0+1}\nv_cvt_pk_bf16_f32 v{d+1}, v{b0+2}, v{b0+3}')
            A(f'v_cvt_pk_bf16_f32 v{d+2}, v{b1}, v{b1+1}\nv_cvt_pk_bf16_f32 v{d+3}, v{b1+2}, v{b1+3}')
            for q in range(4): A(f'v_pk_max_i16 v{d+q}, v{d+q}, 0')
            A(f'buffer_store_dwordx4 v[{d}:{d+3}], v16, s[8:11], s42 offen offset:{j*1024}')
        if tb < 3: A(f's_add_u32 s42, s42, {112*1024}')
    stamp(A, 5); stamp_flush(A, 4, 6)
    A.label(name + '_end')
    A('s_endpgm')
    return (name, 256, 128, 102)
```

```python
from common import *
import common

def gemv32(A, name, s_w, wstride, s_colbyte, nvec, lds_vec, lds_red, final):
    pass

def gemv_issue(A, s_w, wstride, s_colbyte):
    A('v_and_b32 v3, 3, v0')
    A('v_lshrrev_b32 v4, 2, v0')
    A(f's_mov_b32 s20, {wstride}')
    A('v_mul_lo_u32 v5, v4, s20')
    A('v_lshl_add_u32 v5, v3, 4, v5')
    A(f'v_add_u32 v5, {s_colbyte}, v5')
    A('s_mov_b32 s21, 0')
    for i in range(16):
        A(f'buffer_load_dwordx4 v[{64+4*i}:{67+4*i}], v5, s[{s_w}:{s_w+3}], s21 offen')
        if i < 15: A(f's_add_u32 s21, s21, {64*wstride}')

def gemv_compute(A, nvec, lds_vec, lds_red):
    A('v_lshlrev_b32 v6, 2, v4')
    for n in range(nvec):
        for i in range(16):
            A(f'ds_read_b32 v{32+16*n+i}, v6 offset:{lds_vec + n*4096 + i*256}')
    acc0 = 128
    for n in range(nvec):
        for j in range(8): A(f'v_mov_b32 v{acc0+8*n+j}, 0')
    A('s_waitcnt lgkmcnt(0)')
    for i in range(16):
        A(f's_waitcnt vmcnt({15-i})')
        if i == 0: stamp(A, 3)
        if i == 15: stamp(A, 4)
        for r in range(4):
            A(f'v_lshlrev_b32 v8, 16, v{64+4*i+r}')
            A(f'v_and_b32 v9, 0xffff0000, v{64+4*i+r}')
            for n in range(nvec):
                A(f'v_fmac_f32 v{acc0+8*n+2*r}, v8, v{32+16*n+i}')
                A(f'v_fmac_f32 v{acc0+8*n+2*r+1}, v9, v{32+16*n+i}')
    regs = [f'v{acc0+j}' for j in range(8*nvec)]
    tmp = [f'v{160+j}' for j in range(8*nvec)]
    for r in regs: A(f'v_add_f32_dpp {r}, {r}, {r} row_ror:8 row_mask:0xf bank_mask:0xf')
    for r in regs: A(f'v_add_f32_dpp {r}, {r}, {r} row_ror:4 row_mask:0xf bank_mask:0xf')
    xsum_rows(A, regs, tmp)
    A('v_lshlrev_b32 v7, 5, v3')
    A('s_lshl_b32 s20, s30, 7')
    A('v_add_u32 v7, s20, v7')
    A('v_cmp_gt_u32 vcc, 4, v1')
    A('s_and_saveexec_b64 s[22:23], vcc')
    for n in range(nvec):
        for h in range(2):
            b = acc0 + 8*n + 4*h
            A(f'ds_write_b128 v7, v[{b}:{b+3}] offset:{lds_red + n*512 + h*16}')
    A('s_mov_b64 exec, s[22:23]')
    A('s_waitcnt lgkmcnt(0)\ns_barrier')
    A('v_lshlrev_b32 v7, 2, v1')
    for n in range(nvec):
        for w in range(4):
            A(f'ds_read_b32 v{10+4*n+w}, v7 offset:{lds_red + n*512 + w*128}')
    A('s_waitcnt lgkmcnt(0)')
    for n in range(nvec):
        b = 10 + 4*n
        A(f'v_add_f32 v{b}, v{b}, v{b+1}')
        A(f'v_add_f32 v{b+2}, v{b+2}, v{b+3}')
        A(f'v_add_f32 v{20+n}, v{b}, v{b+2}')

def k_prep(A, name):
    A(kernel_header(name))
    A(f's_cmp_ge_u32 s2, 256\ns_cbranch_scc1 {name}_end')
    stamp_begin(A)
    load_ptr(A, 4, 'ws'); load_ptr(A, 6, 'c'); load_ptr(A, 36, 'wmod'); load_ptr(A, 38, 'kc'); load_ptr(A, 40, 'vc')
    lane_wave(A)
    A('s_waitcnt lgkmcnt(0)')
    stamp(A, 1)
    srd(A, 8, 4, WS_SIZE)
    A(f's_cmp_ge_u32 s2, 192\ns_cbranch_scc1 {name}_kv')
    srd(A, 12, 36, 1024*6144*2)
    srd(A, 16, 6, 2048)
    A('s_and_b32 s31, s2, 7\ns_mul_i32 s31, s31, 24\ns_lshr_b32 s32, s2, 3\ns_add_u32 s31, s31, s32')
    A('s_lshl_b32 s33, s31, 6')
    A('v_lshlrev_b32 v10, 3, v0')
    A('buffer_load_dwordx2 v[12:13], v10, s[16:19], 0 offen')
    gemv_issue(A, 12, 12288, 's33')
    A('s_waitcnt vmcnt(16)')
    stamp(A, 2)
    unpack_lo(A, 'v14', 'v12'); unpack_hi(A, 'v15', 'v12'); unpack_lo(A, 'v16', 'v13'); unpack_hi(A, 'v17', 'v13')
    for r in range(14, 18):
        A(f'v_mul_f32 v22, {hexf(-math.log2(math.e))}, v{r}')
        A('v_exp_f32 v22, v22')
        A('v_add_f32 v22, 1.0, v22')
        A('v_rcp_f32 v22, v22')
        A(f'v_mul_f32 v{r}, v{r}, v22')
    A('v_cvt_pk_bf16_f32 v12, v14, v15\nv_cvt_pk_bf16_f32 v13, v16, v17')
    unpack_lo(A, 'v14', 'v12'); unpack_hi(A, 'v15', 'v12'); unpack_lo(A, 'v16', 'v13'); unpack_hi(A, 'v17', 'v13')
    A('v_mov_b32 v24, v14\nv_mov_b32 v25, v15\nv_mov_b32 v26, v16\nv_mov_b32 v27, v17')
    A('v_lshlrev_b32 v10, 4, v0')
    A('ds_write_b128 v10, v[24:27]')
    A('s_waitcnt lgkmcnt(0)\ns_barrier')
    gemv_compute(A, 1, 0, 8192)
    A('v_cvt_pk_bf16_f32 v20, v20, v20')
    unpack_lo(A, 'v20', 'v20')
    A('s_lshr_b32 s34, s31, 5')
    A('s_cmp_eq_u32 s34, 1\ns_cbranch_scc1 ' + name + '_plus1')
    A('s_cmp_eq_u32 s34, 4\ns_cbranch_scc0 ' + name + '_st')
    A.label(name + '_plus1')
    A('v_add_f32 v20, 1.0, v20')
    A('v_cvt_pk_bf16_f32 v20, v20, v20')
    unpack_lo(A, 'v20', 'v20')
    A.label(name + '_st')
    A('s_lshl_b32 s33, s31, 7')
    A(f's_add_u32 s33, s33, {WS_MOD}')
    A('v_lshlrev_b32 v7, 2, v0')
    A('v_cmp_gt_u32 vcc, 32, v0')
    A('s_and_saveexec_b64 s[22:23], vcc')
    A(f's_cbranch_execz {name}_fin')
    A('buffer_store_dword v20, v7, s[8:11], s33 offen')
    A(f's_branch {name}_fin')
    A.label(name + '_kv')
    srd(A, 12, 38, 4*2048*128*2)
    srd(A, 16, 40, 4*2048*128*2)
    A('s_sub_u32 s31, s2, 192')
    A('s_lshr_b32 s32, s31, 4\ns_and_b32 s33, s31, 15')
    A('s_lshl_b32 s34, s32, 19')
    A('s_lshl_b32 s35, s33, 13')
    A('s_add_u32 s34, s34, s35')
    A(f's_add_u32 s34, s34, {1536*256}')
    A('s_lshl_b32 s35, s31, 14')
    A(f's_add_u32 s35, s35, {WS_KV}')
    A('v_and_b32 v3, 15, v1')
    A('v_lshrrev_b32 v4, 4, v1')
    A('v_lshlrev_b32 v5, 8, v3')
    A('v_lshl_add_u32 v5, v4, 3, v5')
    A('s_lshl_b32 s20, s30, 6')
    A('v_add_u32 v5, s20, v5')
    for j in range(2):
        A(f's_add_u32 s21, s34, {j*16*256}')
        A(f'buffer_load_dwordx2 v[{12+4*j}:{13+4*j}], v5, s[12:15], s21 offen')
        A(f'buffer_load_dwordx2 v[{14+4*j}:{15+4*j}], v5, s[12:15], s21 offen offset:32')
    A('v_lshlrev_b32 v6, 10, v4')
    A('v_lshl_add_u32 v6, v3, 1, v6')
    A('s_lshl_b32 s20, s30, 5')
    A('v_add_u32 v6, s20, v6')
    for j in range(2):
        for e in range(8):
            key = 16*(e >> 2) + (e & 3)
            A(f's_add_u32 s21, s34, {j*128 + key*256}')
            A(f'buffer_load_ushort v{32+8*j+e}, v6, s[16:19], s21 offen')
    A('s_waitcnt vmcnt(0)')
    for j in range(2):
        for r in range(4):
            A(f'v_lshl_or_b32 v{24+4*j+r}, v{33+8*j+2*r}, 16, v{32+8*j+2*r}')
    A('v_lshlrev_b32 v7, 4, v1')
    A('s_waitcnt vmcnt(0)')
    for j in range(2):
        A('s_lshl_b32 s20, s30, 10')
        A(f's_add_u32 s20, s20, {j*4096}')
        A('s_add_u32 s20, s20, s35')
        A(f'buffer_store_dwordx4 v[{12+4*j}:{15+4*j}], v7, s[8:11], s20 offen')
        A('s_add_u32 s20, s20, 8192')
        A(f'buffer_store_dwordx4 v[{24+4*j}:{27+4*j}], v7, s[8:11], s20 offen')
    A.label(name + '_fin')
    stamp(A, 5); stamp_flush(A, 0, 6)
    A.label(name + '_end')
    A('s_endpgm')
    return (name, 192, 0, 102)

def k_ln1(A, name):
    A(kernel_header(name))
    A(f's_cmp_ge_u32 s2, 368\ns_cbranch_scc1 {name}_end')
    stamp_begin(A)
    load_ptr(A, 4, 'ws'); load_ptr(A, 6, 'x'); load_ptr(A, 36, 'w1')
    lane_wave(A)
    A('s_waitcnt lgkmcnt(0)')
    stamp(A, 1)
    srd(A, 8, 4, WS_SIZE)
    A(f's_cmp_ge_u32 s2, 256\ns_cbranch_scc1 {name}_uv')
    srd(A, 12, 6, 2048*2048)
    A('v_and_b32 v3, 7, v0')
    A('v_bfe_u32 v4, v0, 3, 2')
    A('v_lshrrev_b32 v5, 5, v0')
    A('v_lshlrev_b32 v6, 6, v5')
    A('v_lshl_add_u32 v6, v4, 3, v6')
    A('v_lshl_add_u32 v7, v3, 11, v6')
    A('s_lshl_b32 s20, s2, 14')
    for i in range(4):
        A(f'buffer_load_dwordx2 v[{16+4*i}:{17+4*i}], v7, s[12:15], s20 offen offset:{i*512}')
        A(f'buffer_load_dwordx2 v[{18+4*i}:{19+4*i}], v7, s[12:15], s20 offen offset:{i*512+32}')
    A('v_lshlrev_b32 v8, 1, v6')
    A(f's_mov_b32 s21, {WS_MOD}')
    for i in range(4):
        for sub in range(2):
            A(f'buffer_load_dwordx4 v[{64+8*i+4*sub}:{67+8*i+4*sub}], v8, s[8:11], s21 offen offset:{i*1024+sub*64}')
    A(f's_mov_b32 s21, {WS_MOD+4096}')
    for i in range(4):
        for sub in range(2):
            A(f'buffer_load_dwordx4 v[{96+8*i+4*sub}:{99+8*i+4*sub}], v8, s[8:11], s21 offen offset:{i*1024+sub*64}')
    A('s_lshr_b32 s22, s2, 1\ns_lshl_b32 s22, s22, 15')
    A('s_and_b32 s23, s2, 1\ns_lshl_b32 s23, s23, 7\ns_add_u32 s22, s22, s23')
    A('v_lshlrev_b32 v9, 10, v5')
    A('v_lshl_add_u32 v9, v4, 8, v9')
    A('v_lshl_add_u32 v9, v3, 4, v9')
    A('s_waitcnt vmcnt(16)')
    stamp(A, 2)
    A(f's_add_u32 s23, s22, {WS_XF}')
    for i in range(4):
        A(f'buffer_store_dwordx4 v[{16+4*i}:{19+4*i}], v9, s[8:11], s23 offen')
        if i < 3: A('s_add_u32 s23, s23, 8192')
    for j in range(16):
        unpack_lo(A, f'v{32+2*j}', f'v{16+j}'); unpack_hi(A, f'v{33+2*j}', f'v{16+j}')
    def reduce_tok(reg, ldsoff):
        A(f'v_add_f32_dpp {reg}, {reg}, {reg} row_ror:8 row_mask:0xf bank_mask:0xf')
        xsum_rows(A, [reg], ['v11'])
        A('v_lshlrev_b32 v12, 2, v3')
        A('s_lshl_b32 s24, s30, 5')
        A('v_add_u32 v13, s24, v12')
        A('v_cmp_gt_u32 vcc, 8, v1')
        A('s_and_saveexec_b64 s[26:27], vcc')
        A(f'ds_write_b32 v13, {reg} offset:{ldsoff}')
        A('s_mov_b64 exec, s[26:27]')
        A('s_waitcnt lgkmcnt(0)\ns_barrier')
        for w in range(4): A(f'ds_read_b32 v{128+w}, v12 offset:{ldsoff + 32*w}')
        A('s_waitcnt lgkmcnt(0)')
        A(f'v_add_f32 v128, v128, v129\nv_add_f32 v130, v130, v131\nv_add_f32 {reg}, v128, v130')
    A('v_add_f32 v10, v32, v33')
    for j in range(34, 64): A(f'v_add_f32 v10, v10, v{j}')
    reduce_tok('v10', 0)
    A(f'v_mul_f32 v10, {hexf(1/1024)}, v10')
    for j in range(32, 64): A(f'v_sub_f32 v{j}, v{j}, v10')
    A('v_mul_f32 v14, v32, v32')
    for j in range(33, 64): A(f'v_fmac_f32 v14, v{j}, v{j}')
    reduce_tok('v14', 256)
    A(f'v_mov_b32 v15, {hexf(1e-5)}')
    A(f'v_fmac_f32 v15, {hexf(1/1024)}, v14')
    A('v_rsq_f32 v15, v15')
    stamp(A, 3)
    A('s_waitcnt vmcnt(0)')
    stamp(A, 4)
    A(f's_mov_b32 s24, {hexf(CQ)}')
    for j in range(32):
        A(f'v_mul_f32 v{32+j}, v{32+j}, v15')
        A(f'v_fma_f32 v{32+j}, v{32+j}, v{96+j}, v{64+j}')
        A(f'v_mul_f32 v{32+j}, s24, v{32+j}')
    for j in range(16):
        A(f'v_cvt_pk_bf16_f32 v{16+j}, v{32+2*j}, v{33+2*j}')
    A(f's_add_u32 s23, s22, {WS_H}')
    for i in range(4):
        A(f'buffer_store_dwordx4 v[{16+4*i}:{19+4*i}], v9, s[8:11], s23 offen')
        if i < 3: A('s_add_u32 s23, s23, 8192')
    A(f's_branch {name}_fin')
    A.label(name + '_uv')
    srd(A, 12, 36, 1024*7168)
    A('s_sub_u32 s31, s2, 256')
    A('s_and_b32 s32, s31, 7\ns_mul_i32 s32, s32, 14\ns_lshr_b32 s31, s31, 3\ns_add_u32 s31, s31, s32')
    A('s_lshl_b32 s33, s31, 6')
    A('v_lshlrev_b32 v10, 4, v0')
    A(f's_mov_b32 s21, {WS_MOD + 4*4096}')
    A('buffer_load_dwordx4 v[12:15], v10, s[8:11], s21 offen')
    A(f's_mov_b32 s21, {WS_MOD + 3*4096}')
    A('buffer_load_dwordx4 v[16:19], v10, s[8:11], s21 offen')
    gemv_issue(A, 12, 7168, 's33')
    A('s_waitcnt vmcnt(16)')
    stamp(A, 2)
    A('ds_write_b128 v10, v[12:15]')
    A('ds_write_b128 v10, v[16:19] offset:4096')
    A('s_waitcnt lgkmcnt(0)\ns_barrier')
    gemv_compute(A, 2, 0, 8192)
    A('s_lshl_b32 s33, s31, 7')
    A(f's_add_u32 s33, s33, {WS_U}')
    A('v_lshlrev_b32 v7, 2, v0')
    A('v_cmp_gt_u32 vcc, 32, v0')
    A('s_and_saveexec_b64 s[22:23], vcc')
    A(f's_cbranch_execz {name}_fin')
    A('buffer_store_dword v20, v7, s[8:11], s33 offen')
    A(f's_add_u32 s33, s33, {WS_V - WS_U}')
    A('buffer_store_dword v21, v7, s[8:11], s33 offen')
    A.label(name + '_fin')
    stamp(A, 5); stamp_flush(A, 1, 6)
    A.label(name + '_end')
    A('s_endpgm')
    return (name, 192, 0, 102)
```

```python
import sys, os
from common import *
import hazard
from k_prep import *
NAME = 'adaLN_cond__sliding_block_cached__dense_activation_relu__prompt'
HEADER = open('cdna_kernels/' + NAME + '.s.ref').read().split('; Override launch geometry')[0]

def build(kernels, out, with_meta=False, verbose=False):
    A = Asm()
    descs = []
    hdr = HEADER
    for (fn, name, grid, lds) in kernels:
        hdr += f'; @launch kernel={name} grid=({grid},1,1) block=(256,1,1) lds={lds}\n'
    A('.amdgcn_target "amdgcn-amd-amdhsa--gfx950"\n.text')
    seen = set()
    for (fn, name, grid, lds) in kernels:
        if name in seen: continue
        seen.add(name)
        descs.append(fn(A, name))
    lines, n = hazard.fix(A.lines, verbose)
    A.lines = lines
    A('.section .rodata,"a"\n.p2align 6')
    for (name, vg, ag, sg) in descs:
        A(kernel_desc(name, vg, ag, sg))
    txt = hdr + A.text()
    if with_meta:
        txt += metadata([(name, ((vg+3)//4*4 + ag) if ag else vg, sg, 256) for (name, vg, ag, sg) in descs])
    open(out, 'w').write(txt)
    print(out, 'bytes', len(txt), 'nops inserted', n)
    return [(name, grid, lds) for (fn, name, grid, lds) in kernels]

def kernel_list():
    ks = [(k_prep, 'prep_kernel', 256, 12288), (k_ln1, 'ln1_kernel', 368, 12288)]
    try:
        from k_attn import k_qattn
        ks.append((k_qattn, 'qattn_kernel', 256, 147456))
        from k_gemm import k_wo, k_w1, k_w2
        ks += [(k_wo, 'wo_kernel', 256, 65536), (k_w1, 'w1_kernel', 224, 65536), (k_w2, 'w2_kernel', 256, 65536)]
    except ImportError as e:
        print('partial build:', e)
    return ks

if __name__ == '__main__':
    import json
    import common
    ks = kernel_list()
    common.STAMPS = True
    l = build(ks, 'dev.s', with_meta=True)
    json.dump(l, open('dev.json', 'w'))
    common.STAMPS = False
    build(ks, 'dev_nostamp.s', with_meta=True)
    build(ks, 'cdna_kernels/' + NAME + '.s', with_meta=False)
```

```python
from asmlib import *
import math
KA = dict(x=0, kc=8, vc=16, wq=24, wo=32, bx=40, w1=48, w2=56, c=64, wmod=72, out=80, dbg=88, ws=96)
WS_H   = 0x0000000
WS_XF  = 0x0400000
WS_O   = 0x0800000
WS_X1  = 0x1800000
WS_Y   = 0x1C00000
WS_H1  = 0x2000000
WS_KV  = 0x3000000
WS_MOD = 0x3100000
WS_U   = 0x3108000
WS_V   = 0x310C000
WS_ST  = 0x3110000
WS_MODP = 0x3150000
WS_UVP  = 0x3180000
WS_END = 0x3200000
WS_FLG = 0x3200000
WS_CNT = WS_FLG + 2048*128
WS_XB1 = 0x4000000
WS_XB2 = 0x4800000
WS_SIZE = 0x5000000
CQ = math.log2(math.e) / math.sqrt(128.0)
import struct
def f32bits(x): return struct.unpack('<I', struct.pack('<f', x))[0]
def hexf(x): return hex(f32bits(x))

def srd(A, sreg, sptr, nbytes):
    if sreg != sptr:
        A(f's_mov_b32 s{sreg}, s{sptr}')
        A(f's_mov_b32 s{sreg+1}, s{sptr+1}')
    A(f's_mov_b32 s{sreg+2}, {hex(nbytes)}')
    A(f's_mov_b32 s{sreg+3}, 0x20000')

def load_ptr(A, sreg, name):
    A(f's_load_dwordx2 s[{sreg}:{sreg+1}], s[0:1], {KA[name]}')

def lane_wave(A, v_lane='v1', s_wave='s30', vt='v2'):
    A(f'v_and_b32 {v_lane}, 63, v0')
    A(f'v_lshrrev_b32 {vt}, 6, v0')
    A('s_nop 0')
    A(f'v_readfirstlane_b32 {s_wave}, {vt}')

def xsum_rows(A, regs, tmp, op='v_add_f32'):
    for r, t in zip(regs, tmp): A(f'v_mov_b32 {t}, {r}')
    for r, t in zip(regs, tmp): A(f'v_permlane16_swap_b32 {r}, {t}')
    for r, t in zip(regs, tmp): A(f'{op} {r}, {r}, {t}')
    for r, t in zip(regs, tmp): A(f'v_mov_b32 {t}, {r}')
    for r, t in zip(regs, tmp): A(f'v_permlane32_swap_b32 {r}, {t}')
    for r, t in zip(regs, tmp): A(f'{op} {r}, {r}, {t}')

def unpack_lo(A, d, s_): A(f'v_lshlrev_b32 {d}, 16, {s_}')
def unpack_hi(A, d, s_): A(f'v_and_b32 {d}, 0xffff0000, {s_}')

STAMPS = False
STAMP_CLK = False
import sys
def _st(): return sys.modules[__name__].STAMPS
WS_TS = 0x3800000
def stamp(A, i):
    if _st():
        A(f'{"s_memtime" if sys.modules[__name__].STAMP_CLK else "s_memrealtime"} s[{84+2*i}:{85+2*i}]')
def stamp_flush(A, launch_idx, n):
    if not _st(): return
    lab = A.newlabel('tsf')
    A('s_waitcnt lgkmcnt(0)')
    A('s_mov_b64 exec, -1')
    A(f's_cmp_eq_u32 s30, 0\ns_cbranch_scc0 {lab}')
    for i in range(8):
        A(f'v_mov_b32 v{2+i}, s{84+2*i}' if i < n else f'v_mov_b32 v{2+i}, 0')
    A(f's_lshl_b32 s82, s83, 5')
    A(f's_add_u32 s82, s82, {WS_TS + launch_idx*0x8000}')
    A('v_mov_b32 v1, 0')
    A('s_mov_b64 exec, 1')
    A('buffer_store_dwordx4 v[2:5], v1, s[8:11], s82 offen')
    A('buffer_store_dwordx4 v[6:9], v1, s[8:11], s82 offen offset:16')
    A.label(lab)
def stamp_begin(A):
    if _st():
        A('s_mov_b32 s83, s2')
        stamp(A, 0)

def prefetch_w(A, kname, nbytes, s_srd, s_ptr, vaddr, vdummy, s_tmp, nwg=256, s_wg='s2', sh=7):
    load_ptr(A, s_ptr, kname)
    A(f'v_and_b32 {vaddr}, 63, v0')
    A(f'v_lshlrev_b32 {vaddr}, {sh}, {vaddr}')
    A(f's_lshl_b32 s{s_tmp}, {s_wg}, 2')
    A(f's_add_u32 s{s_tmp}, s{s_tmp}, s30')
    per_wave = -(-nbytes // (nwg*4))
    step = 64 << sh
    per_wave = -(-per_wave // step) * step
    A(f's_mul_i32 s{s_tmp}, s{s_tmp}, {per_wave}')
    A('s_waitcnt lgkmcnt(0)')
    srd(A, s_srd, s_ptr, nbytes)
    for i in range(per_wave // step):
        A(f'buffer_load_dword {vdummy}, {vaddr}, s[{s_srd}:{s_srd+3}], s{s_tmp} offen')
        if i + 1 < per_wave // step: A(f's_add_u32 s{s_tmp}, s{s_tmp}, {step}')

def round_bf16(A, r):
    A(f'v_cvt_pk_bf16_f32 {r}, {r}, {r}')
    A(f'v_lshlrev_b32 {r}, 16, {r}')

def modsum_issue(A, secs, lncols, s_col4, vaddr, vdst, s_tmp):
    n = 1 << lncols
    A(f'v_and_b32 {vaddr}, {n-1}, v0')
    A(f'v_lshlrev_b32 {vaddr}, 2, {vaddr}')
    lo = min(secs)
    if len(secs) == 2:
        A(f'v_lshrrev_b32 v{vdst}, {lncols}, v0')
        A(f'v_and_b32 v{vdst}, 1, v{vdst}')
        if secs[1] < secs[0]: A(f'v_xor_b32 v{vdst}, 1, v{vdst}')
        A(f'v_mul_u32_u24 v{vdst}, {abs(secs[1]-secs[0])*4096}, v{vdst}')
        A(f'v_add_u32 {vaddr}, {vaddr}, v{vdst}')
    A(f's_add_u32 s{s_tmp}, {s_col4}, {WS_MODP + lo*4096}')
    for sl in range(8):
        A(f'buffer_load_dword v{vdst+sl}, {vaddr}, s[8:11], s{s_tmp} offen')
        if sl < 7: A(f's_add_u32 s{s_tmp}, s{s_tmp}, {6144*4}')

def modsum_finish(A, secs, lncols, vdst, vtmp, lds_off):
    d = vdst
    A(f'v_add_f32 v{d}, v{d}, v{d+1}\nv_add_f32 v{d+2}, v{d+2}, v{d+3}\nv_add_f32 v{d+4}, v{d+4}, v{d+5}\nv_add_f32 v{d+6}, v{d+6}, v{d+7}')
    A(f'v_add_f32 v{d}, v{d}, v{d+2}\nv_add_f32 v{d+4}, v{d+4}, v{d+6}\nv_add_f32 v{d}, v{d}, v{d+4}')
    round_bf16(A, f'v{d}')
    plus = [s in (1, 4) for s in secs]
    if any(plus):
        A(f'v_add_f32 v{d+1}, 1.0, v{d}')
        round_bf16(A, f'v{d+1}')
        if all(plus):
            A(f'v_mov_b32 v{d}, v{d+1}')
        else:
            A(f'v_lshrrev_b32 {vtmp}, {lncols}, v0')
            A(f'v_and_b32 {vtmp}, 1, {vtmp}')
            A(f'v_cmp_eq_u32 vcc, {plus.index(True)}, {vtmp}')
            A(f'v_cndmask_b32 v{d}, v{d}, v{d+1}, vcc')
    A(f'v_lshlrev_b32 {vtmp}, 2, v0')
    A(f'v_add_u32 {vtmp}, {lds_off}, {vtmp}')
    A(f'ds_write_b32 {vtmp}, v{d}')

def stamp_flush2(A, idx, n, vb, s_wg):
    if not _st(): return
    lab = A.newlabel('tsf')
    A('s_waitcnt lgkmcnt(0)')
    A(f's_cmp_eq_u32 s30, 0\ns_cbranch_scc0 {lab}')
    for i in range(8):
        A(f'v_mov_b32 v{vb+i}, s{84+2*i}' if i < n else f'v_mov_b32 v{vb+i}, 0')
    A(f's_lshl_b32 s82, {s_wg}, 5')
    A(f's_add_u32 s82, s82, {WS_TS + idx*0x8000}')
    A(f'v_mov_b32 v{vb+8}, 0')
    A('s_mov_b64 exec, 1')
    A(f'buffer_store_dwordx4 v[{vb}:{vb+3}], v{vb+8}, s[8:11], s82 offen')
    A(f'buffer_store_dwordx4 v[{vb+4}:{vb+7}], v{vb+8}, s[8:11], s82 offen offset:16')
    A('s_mov_b64 exec, -1')
    A.label(lab)
```

```python
from asmlib import *

W_POL = ''
class GemmCfg:
    def __init__(self, **kw):
        self.shape = 32
        self.FEAT = 128
        self.NTB = 2
        self.BK = 64
        self.NS = 4
        self.R = 8
        self.K = 1024
        self.wstride = 8192
        self.acc = 128; self.acc_kind = 'v'
        self.act = 0; self.act_kind = 'a'
        self.wf = 64; self.wf_kind = 'a'
        self.v_tr = 4
        self.v_dma = 2
        self.v_tr_hi = 48
        self.v_act = 12
        self.s_w = 8
        self.s_a = 12
        self.s_woff = 20
        self.s_aoff = 26
        self.s_m0 = 27
        self.s_cnt = 28
        self.s_tmp = 29
        self.lds_base = 0
        self.name = 'g'
        self.order = 'f'
        self.tmpv = 40
        self.stagger = False
        self.__dict__.update(kw)
        self.kstep = 16 if self.shape == 32 else 32
        self.NFB = self.FEAT // self.shape
        self.KT = self.BK // self.kstep
        self.nks = self.K // self.kstep
        self.accn = 16 if self.shape == 32 else 4
        self.rowb = self.FEAT * 2
        self.stage_bytes = self.BK * self.rowb
        self.npiece = self.stage_bytes // 1024 // 4
        self.rows_per_piece = 1024 // self.rowb
        self.ntr = self.NFB if self.shape == 32 else min(self.NFB, 8)
        ut = self.NS
        while (ut * self.KT) % self.R: ut += self.NS
        self.unroll_tiles = ut
        steps = ut * self.KT
        self.AG = 4 if steps % 4 == 0 else (2 if steps % 2 == 0 else 1)
    def reg(self, kind, base, n):
        return v(base, n) if kind == 'v' else a(base, n)
    def accbase(self, fb, tb):
        return self.acc + (fb * self.NTB + tb) * self.accn
    def accreg(self, fb, tb):
        return self.reg(self.acc_kind, self.accbase(fb, tb), self.accn)
    def wreg(self, buf, fb, sub=None):
        base = self.wf + (buf * self.NFB + fb) * 4
        if sub is None: return self.reg(self.wf_kind, base, 4)
        return self.reg(self.wf_kind, base + 2 * sub, 2)
    def actreg(self, slot, tb):
        return self.reg(self.act_kind, self.act + (slot * self.NTB + tb) * 4, 4)
    def mfma(self):
        return 'v_mfma_f32_32x32x16_bf16' if self.shape == 32 else 'v_mfma_f32_16x16x32_bf16'
    def mfma_order(self, st=0):
        if self.order == 'f':
            return [(f, t) for f in range(self.NFB) for t in range(self.NTB)]
        if self.order == 'sf':
            return [(f, t if f % 2 == 0 else self.NTB-1-t) for f in range(self.NFB) for t in range(self.NTB)]

def emit_addr_setup(A, c, v_lane, s_wave, s_featbyte, s_tb0):
    t0, t1, t2, t3 = [f'v{c.tmpv+i}' for i in range(4)]
    lpr = c.rowb // 16
    sh = lpr.bit_length() - 1
    A(f'v_lshrrev_b32 {t0}, {sh}, {v_lane}')
    A(f'v_and_b32 {t1}, {lpr-1}, {v_lane}')
    if c.shape == 32:
        if c.rowb == 256: A(f'v_and_b32 {t2}, 3, {t0}')
        else: A(f'v_bfe_u32 {t2}, {t0}, 1, 1')
        A(f'v_lshlrev_b32 {t2}, 2, {t2}')
    else:
        if c.rowb == 256:
            A(f'v_and_b32 {t2}, 3, {t0}')
        else:
            A(f'v_bfe_u32 {t2}, {t0}, 1, 2')
        A(f'v_lshlrev_b32 {t2}, 1, {t2}')
    A(f'v_xor_b32 {t1}, {t1}, {t2}')
    rows_per_wave = c.npiece * c.rows_per_piece
    A(f's_mul_i32 s{c.s_tmp}, {s_wave}, {rows_per_wave}')
    A(f'v_add_u32 {t0}, s{c.s_tmp}, {t0}')
    A(f's_mov_b32 s{c.s_tmp}, {c.wstride}')
    A(f'v_mul_lo_u32 {t0}, {t0}, s{c.s_tmp}')
    A(f'v_add_u32 {t0}, {s_featbyte}, {t0}')
    A(f'v_lshl_add_u32 v{c.v_dma}, {t1}, 4, {t0}')
    if c.shape == 16 and c.rowb == 256:
        A(f'v_xor_b32 {t1}, 8, {t1}')
        A(f'v_lshl_add_u32 v{c.v_dma+1}, {t1}, 4, {t0}')
    A(f's_mul_i32 s{c.s_m0}, {s_wave}, {c.npiece*1024}')
    if c.lds_base:
        A(f's_add_u32 s{c.s_m0}, s{c.s_m0}, {c.lds_base}')
    if c.shape == 32:
        A(f'v_lshrrev_b32 {t0}, 5, {v_lane}')
        A(f'v_lshlrev_b32 {t0}, 3, {t0}')
        A(f'v_bfe_u32 {t1}, {v_lane}, 2, 2')
        A(f'v_add_u32 {t0}, {t0}, {t1}')
        A(f'v_mul_u32_u24 {t0}, {c.rowb}, {t0}')
        A(f'v_bfe_u32 {t2}, {v_lane}, 4, 1')
        A(f'v_lshlrev_b32 {t2}, 5, {t2}')
        A(f'v_add_u32 {t0}, {t0}, {t2}')
        A(f'v_and_b32 {t2}, 1, {v_lane}')
        A(f'v_lshlrev_b32 {t2}, 4, {t2}')
        A(f'v_bfe_u32 {t3}, {v_lane}, 1, 1')
        A(f'v_lshlrev_b32 {t3}, 3, {t3}')
        A(f'v_add3_u32 {t0}, {t0}, {t2}, {t3}')
        if c.lds_base: A(f'v_add_u32 {t0}, {c.lds_base}, {t0}')
        if c.rowb == 128: A(f'v_bfe_u32 {t1}, {v_lane}, 3, 1')
        for fb in range(c.NFB):
            A(f'v_xor_b32 {t2}, {fb}, {t1}')
            A(f'v_lshlrev_b32 {t2}, 6, {t2}')
            A(f'v_add_u32 v{c.v_tr+fb}, {t0}, {t2}')
    else:
        A(f'v_lshrrev_b32 {t1}, 2, {v_lane}')
        A(f'v_mul_u32_u24 {t0}, {c.rowb}, {t1}')
        A(f'v_and_b32 {t2}, 3, {v_lane}')
        A(f'v_lshl_add_u32 {t0}, {t2}, 3, {t0}')
        if c.lds_base: A(f'v_add_u32 {t0}, {c.lds_base}, {t0}')
        if c.rowb == 256: A(f'v_and_b32 {t1}, 7, {t1}')
        else: A(f'v_bfe_u32 {t1}, {t1}, 1, 2')
        if getattr(c, 's_fbxor', None): A(f'v_xor_b32 {t1}, {c.s_fbxor}, {t1}')
        for fb in range(c.NFB):
            A(f'v_xor_b32 {t2}, {fb}, {t1}')
            A(f'v_lshlrev_b32 {t2}, 5, {t2}')
            A(f'v_add_u32 v{c.v_tr+fb}, {t0}, {t2}')
    if s_tb0 is None: return
    emit_act_addr(A, c, v_lane, s_tb0)

def emit_act_addr(A, c, v_lane, s_tb0):
    t0 = f'v{c.tmpv}'
    tbs = getattr(c, 'tb_stride', c.nks*1024)
    A(f'v_lshlrev_b32 {t0}, 4, {v_lane}')
    A(f's_mul_i32 s{c.s_tmp}, {s_tb0}, {tbs}')
    for tb in range(c.NTB):
        A(f'v_add_u32 v{c.v_act+tb}, s{c.s_tmp}, {t0}')
        if tb + 1 < c.NTB:
            A(f's_add_u32 s{c.s_tmp}, s{c.s_tmp}, {tbs}')

def dma_piece(c, stage, p):
    ins = []
    imm = (p % 4) * 1024
    if p % 4 == 0:
        ins.append(f's_add_u32 m0, s{c.s_m0}, {stage*c.stage_bytes + p*1024}')
    extra = p * c.rows_per_piece * c.wstride - imm
    if extra:
        ins.append(f's_add_u32 s{c.s_tmp}, s{c.s_woff}, {extra}')
        so = c.s_tmp
    else:
        so = c.s_woff
        if p % 4 == 0: ins.append('s_nop 0')
    off = f' offset:{imm}' if imm else ''
    vd = c.v_dma + (p % 2 if (c.shape == 16 and c.rowb == 256) else 0)
    pol = getattr(c, 'w_pol', '') or W_POL
    ins.append(f'buffer_load_dwordx4 v{vd}, s[{c.s_w}:{c.s_w+3}], s{so} offen{off}{pol} lds')
    if p == c.npiece - 1:
        ins.append(f's_add_u32 s{c.s_woff}, s{c.s_woff}, {c.BK*c.wstride}')
    return ins

def act_loads(c, slot, ksmod):
    ins = []
    for tb in range(c.NTB):
        off = f' offset:{ksmod*1024}' if ksmod else ''
        sc = ' sc1' if getattr(c, 'act_sc1', False) else ''
        ins.append(f'buffer_load_dwordx4 {c.actreg(slot, tb)}, v{c.v_act+tb}, s[{c.s_a}:{c.s_a+3}], s{c.s_aoff} offen{off}{sc}')
    if ksmod == c.AG - 1:
        ins.append(f's_add_u32 s{c.s_aoff}, s{c.s_aoff}, {c.AG*1024}')
    return ins

def tr_reads(c, buf, stage, ks):
    ins = []
    for fb in range(c.NFB):
        for sub in range(2):
            if c.shape == 32:
                off = stage*c.stage_bytes + (ks*16 + sub*4) * c.rowb
            else:
                off = stage*c.stage_bytes + (ks*32 + sub*16) * c.rowb
            vr = c.v_tr + fb
            if off >= 65536: off -= 65536; vr = c.v_tr_hi + fb
            ins.append(f'ds_read_b64_tr_b16 {c.wreg(buf, fb, sub)}, v{vr} offset:{off}')
    return ins

def pieces_at_step(c, ks):
    pos = (ks + 1) % c.KT
    per = c.npiece / c.KT
    lo = int(pos * per + 1e-9); hi = int((pos + 1) * per + 1e-9)
    return list(range(lo, hi))

def emit_prologue_loads(A, c):
    A(f's_mov_b32 s{c.s_woff}, {getattr(c, "woff_init", 0)}')
    ai = getattr(c, 'aoff_init', None)
    if ai: A(f's_add_u32 s{c.s_aoff}, {ai}, {hex(getattr(c, "act_base", 0))}')
    else: A(f's_mov_b32 s{c.s_aoff}, {hex(getattr(c, "act_base", 0))}')
    order = []
    sl = 0
    per = -(-(c.R - 1) // (c.NS - 1))
    nfirst = None
    for T in range(c.NS - 1):
        for p in range(c.npiece):
            order += dma_piece(c, T, p)
        for q in range(per):
            if sl < c.R - 1:
                order += act_loads(c, sl, sl % c.AG); sl += 1
        if T == 0: nfirst = count_vmem(order)
    assert sl == c.R - 1
    for p in pieces_at_step(c, c.KT - 1):
        order += dma_piece(c, c.NS - 1, p)
    for i in order: A(i)
    c.pro_order = [i for i in order if i.startswith('buffer_')]
    return count_vmem(order) - nfirst, per

def emit_w_prologue(A, c, t0=0, t1=None):
    last = t1 is None
    if last: t1 = c.NS - 1
    if t0 == 0:
        A(f's_mov_b32 s{c.s_woff}, {getattr(c, "woff_init", 0)}')
        c.pro_order = []
    order = []
    for T in range(t0, t1):
        for p in range(c.npiece):
            order += dma_piece(c, T, p)
    if last:
        for p in pieces_at_step(c, c.KT - 1):
            order += dma_piece(c, c.NS - 1, p)
    for i in order: A(i)
    c.pro_order += [i for i in order if i.startswith('buffer_')]
    return count_vmem(order)

def emit_act_prologue(A, c):
    ai = getattr(c, 'aoff_init', None)
    if ai: A(f's_add_u32 s{c.s_aoff}, {ai}, {hex(getattr(c, "act_base", 0))}')
    else: A(f's_mov_b32 s{c.s_aoff}, {hex(getattr(c, "act_base", 0))}')
    order = []
    for sl in range(c.R - 1):
        order += act_loads(c, sl, sl % c.AG)
    for i in order: A(i)
    n = count_vmem(order)
    c.pro_order += [i for i in order if i.startswith('buffer_')]
    return n

def count_vmem(ins):
    return sum(1 for i in ins if i.startswith('buffer_'))

def spread(items, gaps, lo, hi):
    n = len(items)
    for i, grp in enumerate(items):
        g = lo + (i * (hi - lo)) // max(n, 1)
        gaps[g] += grp

def build_fills(c):
    steps = c.unroll_tiles * c.KT
    nm = c.NFB * c.NTB
    fills = []
    for st in range(steps):
        T, ks = divmod(st, c.KT)
        gaps = [[] for _ in range(nm)]
        nT, nks_ = divmod(st + 1, c.KT)
        trs = tr_reads(c, (st + 1) % 2, nT % c.NS, nks_)
        al = act_loads(c, (st - 1) % c.R, (st + c.R - 1) % c.AG)
        vm = []
        for ins in al:
            if ins.startswith('buffer'): vm.append([ins])
            else: vm[-1].append(ins)
        Tp = T + c.NS if ks == c.KT - 1 else T + c.NS - 1
        for p in pieces_at_step(c, ks):
            vm.append(dma_piece(c, Tp % c.NS, p))
        if c.layout == 0:
            spread([[t] for t in trs], gaps, 0, nm // 2)
            spread(vm, gaps, nm // 2, nm)
        elif c.layout == 1:
            spread([[t] for t in trs], gaps, 0, (nm * 3) // 4)
            spread(vm, gaps, 0, nm)
        elif c.layout == 2:
            spread([[t] for t in trs], gaps, 0, min(nm, len(trs)))
            spread(vm, gaps, 1, nm)
        elif c.layout == 3:
            spread([[t] for t in trs], gaps, 0, (nm * 3) // 4)
            spread(vm, gaps, nm // 2, nm)
        elif c.layout == 4:
            spread([[t] for t in trs], gaps, 0, nm)
            spread(vm, gaps, 0, nm // 2)
        elif c.layout == 5:
            prs = [trs[i:i+2] for i in range(0, len(trs), 2)]
            for i, pr in enumerate(prs): gaps[min(2*i * nm // (2*len(prs)), nm-1) // 2 * 2] += pr
            for i, g_ in enumerate(vm): gaps[min(((i * nm) // len(vm)) // 2 * 2 + 1, nm - 1)] += g_
        fills.append(gaps)
    return fills, steps

def emit_loop(A, c, npro_after=0):
    fills, steps = build_fills(c)
    assert c.nks % steps == 0
    niter = c.nks // steps
    nv = [sum(count_vmem(g) for g in f) for f in fills]
    def vm_after_act(st):
        src = (st - (c.R - 1)) % steps
        flat = [i for g in fills[src] for i in g]
        idx = max(j for j, i in enumerate(flat) if i.startswith('buffer') and not i.endswith('lds'))
        n = count_vmem(flat[idx+1:])
        for d in range(1, c.R - 1):
            n += nv[(src + d) % steps]
        return n
    def vm_after_dma(st):
        src = st - (c.NS - 2) * c.KT - 1
        while not pieces_at_step(c, src % c.KT): src -= 1
        flat = [i for g in fills[src % steps] for i in g]
        idx = max(j for j, i in enumerate(flat) if i.endswith('lds'))
        n = count_vmem(flat[idx+1:])
        for d in range(src + 1, st):
            n += nv[d % steps]
        return n
    def simulate(n0):
        seq = []; cnt = {'a': 0, 'd': 0}
        def tag(ins):
            if ins.endswith('lds') and f's[{c.s_w}:' not in ins:
                tg = ('x', 0)
            elif ins.endswith('lds'):
                tg = ('d', cnt['d'] // c.npiece); cnt['d'] += 1
            else:
                tg = ('a', cnt['a'] // c.NTB); cnt['a'] += 1
            return tg
        for ins in c.pro_order: seq.append(tag(ins))
        state = {'done': 0}
        def check(n, needs):
            state['done'] = max(state['done'], len(seq) - n)
            for nd in needs:
                if nd not in seq: return False
                last = max(j for j, tg in enumerate(seq) if tg == nd)
                if last >= state['done']: return False
            return True
        if not check(n0, [('d', 0)]): return False
        for st in range(2 * steps):
            T, ks = divmod(st, c.KT)
            n = vm_after_act(st % steps)
            needs = [('a', st)]
            if ks == c.KT - 1:
                n = min(n, vm_after_dma(st % steps + steps))
                needs.append(('d', T + 1))
            if not check(min(n, 63), needs): return False
            for g in fills[st % steps]:
                for ins in g:
                    if ins.startswith('buffer_'): seq.append(tag(ins))
        return True
    while npro_after > 0 and not simulate(npro_after): npro_after -= 1
    assert simulate(npro_after), c.name
    lab = f'{c.name}_loop'
    if c.NS * c.stage_bytes > 65536:
        for fb in range(c.NFB): A(f'v_add_u32 v{c.v_tr_hi+fb}, 0x10000, v{c.v_tr+fb}')
    A(f's_mov_b32 s{c.s_cnt}, 0')
    A(f's_waitcnt vmcnt({min(npro_after,63)})')
    A('s_barrier')
    for ins in tr_reads(c, 0, 0, 0): A(ins)
    A.label(lab)
    for st in range(steps):
        T, ks = divmod(st, c.KT)
        n = vm_after_act(st)
        bar = ks == c.KT - 1
        if bar: n = min(n, vm_after_dma(st))
        A(f's_waitcnt vmcnt({min(n,63)}) lgkmcnt(0)')
        if bar: A('s_barrier')
        slot = st % c.R
        for g, (fb, tb) in enumerate(c.mfma_order(st)):
            A(f'{c.mfma()} {c.accreg(fb,tb)}, {c.wreg(st%2, fb)}, {c.actreg(slot, tb)}, {c.accreg(fb,tb)}')
            for ins in fills[st][g]:
                ab = getattr(c, 'ablate', '')
                if 'a' in ab and ins.startswith('buffer') and not ins.endswith('lds'): continue
                if 'd' in ab and ins.endswith('lds'): continue
                if 't' in ab and ins.startswith('ds_read'): continue
                A(ins)
    A(f's_add_u32 s{c.s_cnt}, s{c.s_cnt}, 1')
    A(f's_cmp_lt_u32 s{c.s_cnt}, {niter}')
    A(f's_cbranch_scc1 {lab}')
```

```python
from common import *
from gemmlib import *
import common
from k_prep import gemv_issue, gemv_compute, GR

LDS_K = 65536
LDS_V = 65536 + 32768
V_L16 = 16
V_KA, V_VA = 17, 18
V_LB = 19
V_L = 20
V_NEGM = 24
V_PFA, V_PFI, V_PFD = 48, 50, 52
V_Q = 64
V_S = [128, 160]
V_P = [192, 208]
V_ONES = 240
A_O = 0
A_F = 128
A_LS = 160
A_1 = 176
S_KVOFF = 50
S_IT = 51
S_T0, S_T1 = 52, 53
S_WK = 54
S_RING, S_RING2 = 55, 49
S_GK, S_GV = 56, 57
S_KB, S_VB = 58, 59
S_XB = 48
MFMA = 'v_mfma_f32_16x16x32_bf16'
ROWSUM_MFMA = False
PREFETCH = True
SENT = False
ABL = ''
def nvm(): return 4 + int(PREFETCH) + int(SENT)

def qreg(tb, ks): b = V_Q + (tb*4+ks)*4; return v(b, 4)
def sreg(buf, kb, tb): return V_S[buf] + (kb*4+tb)*4
def preg(buf, tb): return V_P[buf] + tb*4
def oreg(db, tb): return A_O + (db*4+tb)*4
def freg(f): return a(A_F + (f % 8)*4, 4)

def emit_kv_dma_static(A, which, tile):
    base = S_KB if which == 'k' else S_VB
    A(f's_add_u32 s{S_T0}, s{S_KVOFF}, {tile*16384 + (8192 if which == "v" else 0)}')
    A(f's_add_u32 m0, s{base}, {(tile % 4)*8192}')
    A('s_nop 0')
    A(f'buffer_load_dwordx4 v{V_L16}, s[8:11], s{S_T0} offen lds')
    A(f'buffer_load_dwordx4 v{V_L16}, s[8:11], s{S_T0} offen offset:1024 lds')

def frag_read(f):
    if f < 8: return f'ds_read_b128 {freg(f)}, v{V_KA} offset:{f*1024}'
    return f'ds_read_b128 {freg(f)}, v{V_VA} offset:{(f-8)*1024}'

COST = {'v_exp': 8, 'buffer': 8, 'global': 8}
def cost(ins):
    for k, c_ in COST.items():
        if ins.startswith(k): return c_
    return 4

def softmax_items(buf):
    items = []
    for tb in range(4):
        rs = [sreg(buf, kb, tb) + r for kb in range(2) for r in range(4)]
        for j in range(0, 8, 2):
            items.append([f'v_exp_f32 v{rs[j]}, v{rs[j]}'])
            items.append([f'v_exp_f32 v{rs[j+1]}, v{rs[j+1]}'])
            if not ROWSUM_MFMA:
                items.append(('dep', [f'v_add_f32 v{V_L+tb}, v{V_L+tb}, v{rs[j]}', f'v_add_f32 v{V_L+tb}, v{V_L+tb}, v{rs[j+1]}']))
        for q in range(0, 4, 2):
            items.append(('dep', [f'v_cvt_pk_bf16_f32 v{preg(buf, tb)+q}, v{rs[2*q]}, v{rs[2*q+1]}',
                          f'v_cvt_pk_bf16_f32 v{preg(buf, tb)+q+1}, v{rs[2*q+2]}, v{rs[2*q+3]}']))
    return [i[1] if isinstance(i, tuple) else i for i in items]

def softmax_ops(buf):
    out = []
    for it in softmax_items(buf):
        if not it[0].startswith('v_exp'): out.append('s_nop 0')
        out += it
    return out

def vm_groups():
    g1 = [f's_add_u32 m0, s{S_RING}, s{S_KB}', f's_add_u32 s{S_GK}, s{S_GK}, 16384',
          f'buffer_load_dwordx4 v{V_L16}, s[8:11], s{S_GK} offen lds',
          f'buffer_load_dwordx4 v{V_L16}, s[8:11], s{S_GK} offen offset:1024 lds']
    g2 = [f's_add_u32 m0, s{S_RING2}, s{S_VB}', f's_add_u32 s{S_GV}, s{S_GV}, 16384',
          f'buffer_load_dwordx4 v{V_L16}, s[8:11], s{S_GV} offen lds',
          f'buffer_load_dwordx4 v{V_L16}, s[8:11], s{S_GV} offen offset:1024 lds']
    g3 = ['s_mov_b64 exec, 0xffff', f'global_load_dword v{V_PFD}, v[{V_PFA}:{V_PFA+1}], off', 's_mov_b64 exec, -1',
          f'v_lshl_add_u64 v[{V_PFA}:{V_PFA+1}], v[{V_PFI}:{V_PFI+1}], 0, v[{V_PFA}:{V_PFA+1}]']
    g4 = [f'buffer_store_dwordx4 v[{V_ONES}:{V_ONES+3}], v{V_L16}, s[8:11], s{S_XB} offen', f's_add_u32 s{S_XB}, s{S_XB}, 1024']
    return [g1, g2] + ([g3] if PREFETCH else []) + ([g4] if SENT else [])

def barrier_group():
    pre = [f's_waitcnt vmcnt({3*nvm()-4}) lgkmcnt(0)', 's_barrier', f'v_add_u32 v{V_KA}, s{S_RING2}, v{V_LB}']
    post = [f's_add_u32 s{S_T0}, s{S_RING}, {LDS_V - LDS_K}', f'v_add_u32 v{V_VA}, s{S_T0}, v{V_LB}',
            f's_add_u32 s{S_RING}, s{S_RING}, 8192', f's_and_b32 s{S_RING}, s{S_RING}, 0x7fff',
            f's_xor_b32 s{S_RING2}, s{S_RING}, 16384', f's_add_u32 s{S_IT}, s{S_IT}, 1']
    return pre, post

def emit_iter(A, par, do_qk, do_sm, do_pv, ring=True, first_reads_done=True, extra=None):
    groups = []
    if do_qk:
        for kb in range(2):
            for ks in range(4):
                g = []
                for tb in (range(4) if ks % 2 == 0 else range(3, -1, -1)):
                    d = v(sreg(1-par, kb, tb), 4)
                    c = v(V_NEGM + tb*4, 4) if ks == 0 else d
                    g.append(f'{MFMA} {d}, {freg(kb*4+ks)}, {qreg(tb, ks)}, {c}')
                groups.append((kb*4+ks, g))
    if do_pv:
        for db in range(8):
            g = []
            for tb in (range(4) if db % 2 == 0 else range(3, -1, -1)):
                o = a(oreg(db, tb), 4)
                g.append(f'{MFMA} {o}, {freg(8+db)}, {v(preg(1-par, tb), 4)}, {o}')
            if ROWSUM_MFMA and db % 2 == 1:
                tb = db // 2
                l = a(A_LS + 4*tb, 4)
                g.append(f'{MFMA} {l}, {a(A_1, 4)}, {v(preg(1-par, tb), 4)}, {l}')
            groups.append((8+db, g))
    ng = len(groups)
    order = [f for f, _ in groups]
    nxt = [0, 1, 2, 3] if ring else []
    AH = 4
    reads = order + nxt
    gaps = [(gi, j) for gi, (f, g) in enumerate(groups) for j in range(len(g))]
    N = {k: [] for k in gaps}
    V = {k: [] for k in gaps}
    busy = set()
    pre, post = barrier_group() if ring else ([], [])
    bar_g = len(order) - AH
    for gi in range(ng):
        k = gi + AH
        if k < len(reads):
            f = reads[k]
            N[(gi, 0)].append(frag_read(f) if k < len(order) else f'ds_read_b128 {freg(f)}, v{V_KA} offset:{f*1024}')
        if gi % 2 == 0 and gi > 0:
            issued = min(gi + AH, len(reads))
            if not (ring and gi == bar_g):
                N[(gi - 1, len(groups[gi-1][1]) - 1)].append(f's_waitcnt lgkmcnt({max(issued - gi - 2, 0)})')
    if ring:
        lastg = (bar_g - 1, len(groups[bar_g-1][1]) - 1)
        N[lastg] += pre[:2]; V[lastg] += pre[2:]; busy.add(lastg)
        sal = [i for i in post if i.startswith('s_')]
        N[(bar_g, 1)] += [post[0]]; V[(bar_g, 1)] += [post[1]]; busy.add((bar_g, 1))
        rest = post[2:]
        slots = [(bar_g, 2), (bar_g + 1, 1), (bar_g + 1, 2), (bar_g + 2, 1)]
        for s_, ins in zip(slots, rest): N[s_].append(ins)
        vg = vm_groups()
        pos = ({4: [0, 3, 6, 9], 3: [0, 4, 8], 2: [1, 6]}[len(vg)] if ng == 16 else [0, 1, 2, 3])
        for p_, g in zip(pos, vg):
            if ng == 16:
                sl = [(p_, 1), (p_, 2), (p_ + 1, 1), (p_ + 1, 2)]
                if g[0].startswith('s_mov_b64 exec'):
                    N[sl[0]] += g[:3]; V[sl[0]] += g[3:]; busy.add(sl[0])
                else:
                    for s_, ins in zip(sl, g):
                        N[s_].append(ins)
                        if ins.startswith('buffer'): busy.add(s_)
            else:
                N[(p_, 1)] += [i for i in g if not i.startswith('v_')]; V[(p_, 1)] += [i for i in g if i.startswith('v_')]
    items = (softmax_items(par) if do_sm else []) + (extra or [])
    if 'e' in ABL: items = [[i.replace('v_exp_f32', 'v_mov_b32') for i in it] for it in items]
    if 's' in ABL: items = []
    free = [k for k in gaps if k not in busy]
    if len(items) <= len(free):
        for n_, it in enumerate(items):
            V[free[(n_ * len(free)) // len(items)]] += it
    else:
        for n_, it in enumerate(items):
            V[gaps[(n_ * len(gaps)) // len(items)]] += it
    if not first_reads_done:
        for f in order[:AH]: A(frag_read(f))
    A(f's_waitcnt lgkmcnt({max(min(AH, len(reads)) - 2, 0)})')
    for gi, (f, g) in enumerate(groups):
        for j, m in enumerate(g):
            A(m)
            for ins in N[(gi, j)]: A(ins)
            for ins in V[(gi, j)]: A(ins)

def k_qattn(A, name):
    c = GemmCfg(name='qp', shape=16, NTB=4, R=4, wstride=8192, K=1024, act=0, act_kind='a', wf=64, wf_kind='a', acc=128,
                v_tr=4, v_act=12, v_dma=2, layout=1, order='sf', s_w=12, s_a=8)
    A(kernel_header(name))
    A(f's_cmp_ge_u32 s2, 256\ns_cbranch_scc1 {name}_end')
    stamp_begin(A)
    load_ptr(A, 4, 'ws'); load_ptr(A, 36, 'wq'); load_ptr(A, 62, 'wo'); load_ptr(A, 64, 'w2'); load_ptr(A, 66, 'w1'); load_ptr(A, 60, 'c'); load_ptr(A, 44, 'wmod')
    lane_wave(A)
    A('s_and_b32 s31, s2, 1\ns_lshl_b32 s31, s31, 2\ns_bfe_u32 s33, s2, 0x20003\ns_add_u32 s31, s31, s33')
    A('s_bfe_u32 s34, s2, 0x20001\ns_lshl_b32 s32, s34, 3\ns_lshr_b32 s33, s2, 5\ns_add_u32 s32, s32, s33')
    A('s_waitcnt lgkmcnt(0)')
    srd(A, 8, 4, WS_SIZE)
    srd(A, 12, 36, 1024*8192)
    srd(A, 68, 60, 2048)
    srd(A, 44, 44, 1024*12288)
    A('s_lshl_b32 s33, s32, 8')
    A('s_lshl_b32 s35, s31, 4\ns_lshl_b32 s38, s30, 2\ns_add_u32 s35, s35, s38')
    emit_addr_setup(A, c, 'v1', 's30', 's33', 's35')
    assert WS_H == 0
    nafter, per = emit_prologue_loads(A, c)
    A(f'v_lshlrev_b32 v{V_L16}, 4, v1')
    A(f's_lshl_b32 s{S_KVOFF}, s34, 18\ns_add_u32 s{S_KVOFF}, s{S_KVOFF}, {WS_KV}')
    A(f's_lshl_b32 s{S_WK}, s30, 11')
    A(f's_add_u32 s{S_KVOFF}, s{S_KVOFF}, s{S_WK}')
    A(f's_add_u32 s{S_KB}, s{S_WK}, {LDS_K}\ns_add_u32 s{S_VB}, s{S_WK}, {LDS_V}')
    n0 = len(A.lines)
    for which, tile in (('k', 0), ('k', 1), ('v', 0), ('k', 2)):
        emit_kv_dma_static(A, which, tile)
    c.pro_order += [l for l in A.lines[n0:] if l.startswith('buffer_')]
    A(f's_add_u32 m0, s{c.s_m0}, {(c.NS-1)*c.stage_bytes}')
    for r in range(128): A(f'v_mov_b32 v{c.acc+r}, 0')
    stamp(A, 1)
    emit_loop(A, c, nafter + 8)
    stamp(A, 2)
    for tb in range(4):
        for ks in range(4):
            b0, b1 = c.accbase(2*ks, tb), c.accbase(2*ks+1, tb)
            q = V_Q + (tb*4+ks)*4
            A(f'v_cvt_pk_bf16_f32 v{q}, v{b0}, v{b0+1}\nv_cvt_pk_bf16_f32 v{q+1}, v{b0+2}, v{b0+3}')
            A(f'v_cvt_pk_bf16_f32 v{q+2}, v{b1}, v{b1+1}\nv_cvt_pk_bf16_f32 v{q+3}, v{b1+2}, v{b1+3}')
    A('s_waitcnt vmcnt(0)')
    A('s_barrier')
    for r in range(128): A(f'v_accvgpr_write_b32 a{A_O+r}, 0')
    for tb in range(4): A(f'v_mov_b32 v{V_L+tb}, 0')
    if ROWSUM_MFMA:
        for r in range(16): A(f'v_accvgpr_write_b32 a{A_LS+r}, 0')
        A('v_mov_b32 v40, 0x3f803f80')
        for r in range(4): A(f'v_accvgpr_write_b32 a{A_1+r}, v40')
    if PREFETCH:
        A('v_and_b32 v40, 3, v1')
        A('s_lshl_b32 s72, s30, 2')
        A('v_add_u32 v40, s72, v40')
        A(f'v_mov_b32 v{V_PFI+1}, 0')
        def grp(mask, ptr, off_instrs, inc):
            A(f's_mov_b64 exec, {hex(mask)}')
            for i_ in off_instrs: A(i_)
            A(f'v_mov_b32 v{V_PFA+1}, s{ptr+1}')
            A(f'v_add_co_u32 v{V_PFA}, vcc, s{ptr}, v41')
            A(f'v_addc_co_u32 v{V_PFA+1}, vcc, 0, v{V_PFA+1}, vcc')
            A(f'v_mov_b32 v{V_PFI}, {inc}')
        grp(0x000f, 62, ['s_lshl_b32 s73, s2, 15', 'v_lshl_add_u32 v41, v40, 7, s73'], 2048)
        grp(0x00f0, 64, ['s_mul_i32 s73, s2, 28672', 'v_mul_u32_u24 v41, 112, v40', 'v_add_u32 v41, s73, v41'], 1792)
        grp(0x0f00, 66, ['v_mul_u32_u24 v41, 112, v40', 'v_add_u32 v41, s73, v41'], 1792)
        grp(0xf000, 44, ['s_lshr_b32 s73, s2, 5', f's_mul_i32 s73, s73, {128*12288}', 's_and_b32 s74, s2, 31', 's_add_u32 s74, s74, 16',
                         's_lshl_b32 s74, s74, 8', 's_add_u32 s73, s73, s74', 'v_lshrrev_b32 v41, 1, v40', 'v_mul_u32_u24 v41, 12288, v41',
                         'v_and_b32 v42, 1, v40', 'v_lshl_add_u32 v41, v42, 7, v41', 'v_add_u32 v41, s73, v41'], 8*12288)
        A('s_mov_b64 exec, -1')
    A(f's_lshl_b32 s{S_XB}, s2, 2\ns_add_u32 s{S_XB}, s{S_XB}, s30\ns_lshl_b32 s{S_XB}, s{S_XB}, 14\ns_add_u32 s{S_XB}, s{S_XB}, {WS_XB1}')
    for r in range(4): A(f'v_mov_b32 v{V_ONES+r}, -1')
    A(f'v_add_u32 v{V_LB}, {LDS_K}, v{V_L16}')
    A(f'v_mov_b32 v{V_KA}, v{V_LB}')
    for tb in range(4):
        for r in range(4): A(f'v_mov_b32 v{V_NEGM+tb*4+r}, 0')
    A(f's_mov_b32 s{S_IT}, -1')
    A(f's_mov_b32 s{S_RING}, {3*8192}\ns_mov_b32 s{S_RING2}, {1*8192}')
    A(f's_add_u32 s{S_GK}, s{S_KVOFF}, {2*16384}')
    A(f's_add_u32 s{S_GV}, s{S_KVOFF}, {8192}')
    emit_iter(A, 1, True, False, False, first_reads_done=False)
    for tb in range(4):
        r0, r1 = sreg(0, 0, tb), sreg(0, 1, tb)
        m = 40 + tb
        A(f'v_max3_f32 v{m}, v{r0}, v{r0+1}, v{r0+2}')
        A(f'v_max3_f32 v{m}, v{m}, v{r0+3}, v{r1}')
        A(f'v_max3_f32 v{m}, v{m}, v{r1+1}, v{r1+2}')
        A(f'v_max_f32 v{m}, v{m}, v{r1+3}')
    xsum_rows(A, [f'v{40+tb}' for tb in range(4)], [f'v{44+tb}' for tb in range(4)], op='v_max_f32')
    for tb in range(4):
        for r in range(4): A(f'v_sub_f32 v{V_NEGM+tb*4+r}, 0, v{40+tb}')
        for kb in range(2):
            for r in range(4): A(f'v_sub_f32 v{sreg(0,kb,tb)+r}, v{sreg(0,kb,tb)+r}, v{40+tb}')
    stamp(A, 3)
    emit_iter(A, 0, True, True, False)
    lab = name + '_att'
    A.label(lab)
    emit_iter(A, 1, True, True, True)
    emit_iter(A, 0, True, True, True)
    A(f's_cmp_lt_u32 s{S_IT}, 15\ns_cbranch_scc1 {lab}')
    A('s_waitcnt lgkmcnt(0)')
    GM = GR(q=56, rg=57, off=58, t0=59, t1=60, t2=61, t3=62, rd=40, res=44, vec=216, w=224, acc=176, tmp=184, s0=S_T0, s1=S_T1, sx=74)
    A('s_and_b32 s72, s2, 31\ns_add_u32 s72, s72, 16\ns_lshr_b32 s73, s2, 5')
    A('s_lshl_b32 s76, s73, 8')
    A('v_and_b32 v63, 127, v0\nv_lshlrev_b32 v63, 1, v63')
    A('buffer_load_ushort v53, v63, s[68:71], s76 offen')
    A(f's_mul_i32 s76, s73, {128*12288}\ns_lshl_b32 s77, s72, 8\ns_add_u32 s76, s76, s77')
    gemv_issue(A, 44, 12288, 's76', 8, GM)
    emit_iter(A, 1, False, True, True, ring=False, first_reads_done=False)
    A(f's_waitcnt vmcnt({2*nvm()+5})')
    A('s_barrier')
    A(f'v_add_u32 v{V_VA}, {LDS_V + 3*8192}, v{V_L16}')
    emit_iter(A, 0, False, False, True, ring=False, first_reads_done=False)
    stamp(A, 4)
    if ROWSUM_MFMA:
        A('s_nop 7')
        for tb in range(4): A(f'v_accvgpr_read_b32 v{V_L+tb}, a{A_LS+4*tb}')
    else:
        xsum_rows(A, [f'v{V_L+tb}' for tb in range(4)], [f'v{44+tb}' for tb in range(4)])
    A(f's_mov_b32 s{S_T0}, {hexf(2.0**100)}')
    A(f'v_add_f32 v41, v{V_L}, v{V_L+1}\nv_add_f32 v42, v{V_L+2}, v{V_L+3}\nv_add_f32 v41, v41, v42')
    A(f'v_cmp_nle_f32 vcc, v41, s{S_T0}')
    A('s_nop 4')
    A(f's_cbranch_vccnz {name}_slow')
    A.label(name + '_norm')
    for tb in range(4): A(f'v_rcp_f32 v{V_L+tb}, v{V_L+tb}')
    A(f's_lshl_b32 s{S_T0}, s35, 17')
    A(f's_lshl_b32 s{S_T1}, s32, 12')
    A(f's_add_u32 s{S_T0}, s{S_T0}, s{S_T1}\ns_add_u32 s{S_T0}, s{S_T0}, {WS_O}')
    cnt = 0
    for tb in range(4):
        for j in range(4):
            t = 128 + 8*(cnt % 4); d = 160 + 4*(cnt % 4); cnt += 1
            for h in range(2):
                for r in range(4): A(f'v_accvgpr_read_b32 v{t+4*h+r}, a{oreg(2*j+h, tb)+r}')
            for q in range(8): A(f'v_mul_f32 v{t+q}, v{t+q}, v{V_L+tb}')
            for q in range(4): A(f'v_cvt_pk_bf16_f32 v{d+q}, v{t+2*q}, v{t+2*q+1}')
            A(f'buffer_store_dwordx4 v[{d}:{d+3}], v{V_L16}, s[8:11], s{S_T0} offen offset:{j*1024}')
        if tb < 3: A(f's_add_u32 s{S_T0}, s{S_T0}, {1 << 17}')
    A('s_waitcnt vmcnt(24)')
    A('v_lshlrev_b32 v54, 16, v53')
    A(f'v_mul_f32 v55, {hexf(-math.log2(math.e))}, v54')
    A('v_exp_f32 v55, v55')
    A('v_add_f32 v55, 1.0, v55')
    A('v_rcp_f32 v55, v55')
    A('v_mul_f32 v54, v54, v55')
    round_bf16(A, 'v54')
    A('v_lshlrev_b32 v55, 2, v0')
    A('ds_write_b32 v55, v54')
    A('s_waitcnt lgkmcnt(0)\ns_barrier')
    gemv_compute(A, 1, 8, 0, 4096, GM, stamps=False, nyoung=16)
    A(f's_mul_i32 s76, s73, {6144*4}\ns_lshl_b32 s77, s72, 9\ns_add_u32 s76, s76, s77')
    A(f's_add_u32 s76, s76, {WS_MODP}')
    A('v_lshlrev_b32 v55, 2, v0')
    A('v_cmp_gt_u32 vcc, 128, v0')
    A('s_and_saveexec_b64 s[74:75], vcc')
    A(f's_cbranch_execz {name}_fin')
    A('buffer_store_dword v44, v55, s[8:11], s76 offen')
    A(f's_branch {name}_fin')
    A.label(name + '_slow')
    emit_slow(A, name)
    A(f's_branch {name}_norm')
    A.label(name + '_fin')
    stamp(A, 5); stamp_flush(A, 2, 6)
    A.label(name + '_end')
    A('s_endpgm')
    return (name, 256, 256, 102)

def emit_slow(A, name):
    global ROWSUM_MFMA
    A(f's_sub_u32 s{S_KVOFF}, s{S_KVOFF}, s{S_WK}')
    A('s_waitcnt vmcnt(0) lgkmcnt(0)')
    def load_frags(first, n, off):
        for f in range(n):
            A(f's_add_u32 s{S_T1}, s{S_T0}, {off + (f//4)*4096}')
            A(f'buffer_load_dwordx4 {a(A_F + f*4, 4)}, v{V_L16}, s[8:11], s{S_T1} offen offset:{(f%4)*1024}')
        A('s_waitcnt vmcnt(0)')
    def qk(cinit):
        for kb in range(2):
            for ks in range(4):
                for tb in range(4):
                    d = v(sreg(0, kb, tb), 4)
                    cc = cinit(tb) if ks == 0 else d
                    A(f'{MFMA} {d}, {a(A_F + (kb*4+ks)*4, 4)}, {qreg(tb, ks)}, {cc}')
        A('s_nop 7')
    for tb in range(4): A(f'v_mov_b32 v{40+tb}, 0xff800000')
    A(f's_mov_b32 s{S_IT}, 0')
    A.label(name + '_slow1')
    A(f's_lshl_b32 s{S_T0}, s{S_IT}, 14\ns_add_u32 s{S_T0}, s{S_T0}, s{S_KVOFF}')
    load_frags(0, 8, 0)
    qk(lambda tb: '0')
    for tb in range(4):
        for kb in range(2):
            r0 = sreg(0, kb, tb)
            A(f'v_max3_f32 v{40+tb}, v{40+tb}, v{r0}, v{r0+1}')
            A(f'v_max3_f32 v{40+tb}, v{40+tb}, v{r0+2}, v{r0+3}')
    A(f's_add_u32 s{S_IT}, s{S_IT}, 1\ns_cmp_lt_u32 s{S_IT}, 16\ns_cbranch_scc1 {name}_slow1')
    xsum_rows(A, [f'v{40+tb}' for tb in range(4)], [f'v{44+tb}' for tb in range(4)], op='v_max_f32')
    for tb in range(4):
        for r in range(4): A(f'v_sub_f32 v{V_NEGM+tb*4+r}, 0, v{40+tb}')
        A(f'v_mov_b32 v{V_L+tb}, 0')
    for r in range(128): A(f'v_accvgpr_write_b32 a{A_O+r}, 0')
    A(f's_mov_b32 s{S_IT}, 0')
    A.label(name + '_slow2')
    A(f's_lshl_b32 s{S_T0}, s{S_IT}, 14\ns_add_u32 s{S_T0}, s{S_T0}, s{S_KVOFF}')
    load_frags(0, 8, 0)
    qk(lambda tb: v(V_NEGM + tb*4, 4))
    save = ROWSUM_MFMA; ROWSUM_MFMA = False
    for ins in softmax_ops(0): A(ins)
    ROWSUM_MFMA = save
    load_frags(0, 8, 8192)
    for db in range(8):
        for tb in range(4):
            o = a(oreg(db, tb), 4)
            A(f'{MFMA} {o}, {a(A_F + db*4, 4)}, {v(preg(0, tb), 4)}, {o}')
    A(f's_add_u32 s{S_IT}, s{S_IT}, 1\ns_cmp_lt_u32 s{S_IT}, 16\ns_cbranch_scc1 {name}_slow2')
    A('s_nop 7')
    xsum_rows(A, [f'v{V_L+tb}' for tb in range(4)], [f'v{44+tb}' for tb in range(4)])
```

```python
from common import *
from gemmlib import *
from k_prep import gemv_issue, gemv_compute, GR
import common
S2 = True

def typeB_cfg(name, K, act_base):
    return GemmCfg(name=name, shape=16, FEAT=64, NTB=2, BK=128, R=8, K=K, wstride=2048, act=0, act_kind='a', wf=64, wf_kind='a',
                   acc=128, v_tr=4, v_act=12, v_dma=2, layout=1, order='sf', s_w=12, s_a=8, act_base=act_base)

DEEP = False
LAY_S = 3
def typeS_cfg(name, Khalf, Kfull, act_base):
    NS, R = (4, 8) if not DEEP else ((8, 16) if Khalf == 2048 else (7, 14))
    return GemmCfg(name=name, shape=16, FEAT=128, NTB=2, BK=64, NS=NS, R=R, K=Khalf, wstride=2048, act=0, act_kind='a', wf=128, wf_kind='a',
                   acc=128, v_tr=4, v_act=12, v_dma=2, layout=LAY_S, order='sf', s_w=12, s_a=8, act_base=act_base,
                   tb_stride=(Kfull//32)*1024, s_fbxor='s70', woff_init='s71', aoff_init='s72')

def mapS(A, Khalf):
    A('s_and_b32 s69, s2, 1')
    A('s_bfe_u32 s31, s2, 0x20001\ns_lshl_b32 s31, s31, 2\ns_bfe_u32 s33, s2, 0x20003\ns_add_u32 s31, s31, s33')
    A('s_lshr_b32 s68, s2, 5')
    A('s_lshl_b32 s32, s68, 1\ns_add_u32 s32, s32, s69')
    A('s_lshl_b32 s70, s69, 2')
    A(f's_mul_i32 s71, s69, {Khalf*2048}')
    A(f's_mul_i32 s72, s69, {(Khalf//32)*1024}')

def exchange_send(A, name, c, xb, flg):
    A('s_lshl_b32 s73, s31, 3\ns_add_u32 s73, s73, s68\ns_lshl_b32 s73, s73, 1')
    A('s_add_u32 s74, s73, s69')
    A('s_xor_b32 s75, s69, 1\ns_add_u32 s75, s73, s75')
    for r in ('s74', 's75'):
        A(f's_lshl_b32 {r}, {r}, 2\ns_add_u32 {r}, {r}, s30')
    A(f's_lshl_b32 s78, s74, 7\ns_add_u32 s78, s78, {flg}')
    A(f's_lshl_b32 s79, s75, 7\ns_add_u32 s79, s79, {flg}')
    for r in ('s74', 's75'):
        A(f's_lshl_b32 {r}, {r}, 14\ns_add_u32 {r}, {r}, {xb}')
    A('s_nop 7')
    for j in range(4):
        for tb in range(2):
            b = c.accbase(4+j, tb); sl = j*2 + tb
            if sl == 4: A('s_add_u32 s75, s75, 4096')
            A(f'buffer_store_dwordx4 v[{b}:{b+3}], v16, s[8:11], s75 offen offset:{(sl%4)*1024} sc1')

def exchange_flag(A, nyoung):
    A('v_mov_b32 v224, 1\nv_mov_b32 v225, 0')
    A(f's_waitcnt vmcnt({nyoung})')
    A('s_mov_b64 exec, 1')
    A('buffer_store_dword v224, v225, s[8:11], s79 offen sc1')
    A('s_mov_b64 exec, -1')

def exchange_recv(A, name, c, flag=True):
    if flag: exchange_flag(A, 0)
    A('v_mov_b32 v225, 0')
    A('s_mov_b64 exec, 1')
    A('s_mov_b32 s76, 0')
    A.label(name + '_poll')
    A('buffer_load_dword v226, v225, s[8:11], s78 offen sc1')
    A('s_waitcnt vmcnt(0)')
    A('v_readfirstlane_b32 s77, v226')
    A('s_add_u32 s76, s76, 1')
    A('s_cmp_eq_u32 s77, 1')
    A(f's_cbranch_scc1 {name}_got')
    A('s_cmp_lt_u32 s76, 0x40000')
    A(f's_cbranch_scc1 {name}_poll')
    A.label(name + '_got')
    A('s_mov_b64 exec, -1')
    A('s_add_u32 s77, s74, 4096')
    for sl in range(8):
        A(f'buffer_load_dwordx4 v[{192+4*sl}:{195+4*sl}], v16, s[8:11], {"s74" if sl < 4 else "s77"} offen offset:{(sl%4)*1024} sc1')
    for j in range(4):
        for tb in range(2):
            b = c.accbase(j, tb); sl = j*2 + tb
            A(f's_waitcnt vmcnt({7-sl})')
            for r in range(4): A(f'v_add_f32 v{b+r}, v{b+r}, v{192+4*sl+r}')

def mapB(A):
    A('s_and_b32 s31, s2, 3\ns_lshl_b32 s31, s31, 2\ns_bfe_u32 s33, s2, 0x20003\ns_add_u32 s31, s31, s33')
    A('s_bfe_u32 s32, s2, 0x10002\ns_lshl_b32 s32, s32, 3\ns_lshr_b32 s33, s2, 5\ns_add_u32 s32, s32, s33')

def load_stats(A, s_tb16, ntb, vbase, vaddr):
    A(f'v_and_b32 {vaddr}, 15, v1')
    A(f'v_lshlrev_b32 {vaddr}, 7, {vaddr}')
    A(f'v_lshrrev_b32 v47, 4, v1')
    A(f'v_lshl_add_u32 {vaddr}, v47, 5, {vaddr}')
    A(f's_lshl_b32 s40, {s_tb16}, 11')
    A(f's_add_u32 s40, s40, {WS_ST}')
    for tb in range(ntb):
        A(f'buffer_load_dwordx4 v[{vbase+8*tb}:{vbase+8*tb+3}], {vaddr}, s[8:11], s40 offen offset:{tb*2048 % 4096}')
        A(f'buffer_load_dwordx4 v[{vbase+8*tb+4}:{vbase+8*tb+7}], {vaddr}, s[8:11], s40 offen offset:{tb*2048 % 4096 + 16}')
        if tb % 2 == 1 and tb + 1 < ntb: A('s_add_u32 s40, s40, 4096')

def finish_stats(A, ntb, vbase, vmean, vsd, tmp):
    for tb in range(ntb):
        b = vbase + 8*tb
        A(f'v_add_f32 v{vmean+tb}, v{b}, v{b+2}\nv_add_f32 v{vsd+tb}, v{b+4}, v{b+6}\nv_add_f32 v{vmean+tb}, v{vmean+tb}, v{vsd+tb}')
    xsum_rows(A, [f'v{vmean+tb}' for tb in range(ntb)], [f'v{tmp+tb}' for tb in range(ntb)])
    for tb in range(ntb):
        b = vbase + 8*tb
        A(f'v_mul_f32 v{vmean+tb}, {hexf(1/16)}, v{vmean+tb}')
        for j in range(4): A(f'v_sub_f32 v{b+2*j}, v{b+2*j}, v{vmean+tb}')
        for j in range(4): A(f'v_mul_f32 v{b+2*j}, v{b+2*j}, v{b+2*j}')
        A(f'v_add_f32 v{b}, v{b}, v{b+2}\nv_add_f32 v{b+4}, v{b+4}, v{b+6}\nv_add_f32 v{b}, v{b}, v{b+4}')
        A(f'v_add_f32 v{b+1}, v{b+1}, v{b+3}\nv_add_f32 v{b+5}, v{b+5}, v{b+7}\nv_add_f32 v{b+1}, v{b+1}, v{b+5}')
        A(f'v_mov_b32 v{vsd+tb}, v{b+1}')
        A(f'v_fmac_f32 v{vsd+tb}, {hexf(64.0)}, v{b}')
    xsum_rows(A, [f'v{vsd+tb}' for tb in range(ntb)], [f'v{tmp+tb}' for tb in range(ntb)])
    for tb in range(ntb):
        A(f'v_mov_b32 v{tmp+tb}, {hexf(1e-5)}')
        A(f'v_fmac_f32 v{tmp+tb}, {hexf(1/1024)}, v{vsd+tb}')
        A(f'v_sqrt_f32 v{vsd+tb}, v{tmp+tb}')

def load_featvec(A, sect_off, s_featbyte4, nfb, vbase, vaddr):
    A(f's_add_u32 s40, {s_featbyte4}, {sect_off}')
    for fb in range(nfb):
        A(f'buffer_load_dwordx4 v[{vbase+4*fb}:{vbase+4*fb+3}], {vaddr}, s[8:11], s40 offen offset:{fb*64}')

def gemmB_common(A, name, c, wname, wbytes, launch_idx, Khalf=None):
    A(kernel_header(name))
    A(f's_cmp_ge_u32 s2, 256\ns_cbranch_scc1 {name}_end')
    stamp_begin(A)
    load_ptr(A, 4, 'ws'); load_ptr(A, 36, wname); load_ptr(A, 38, 'out')
    lane_wave(A)
    if Khalf: mapS(A, Khalf)
    else: mapB(A)
    A('s_waitcnt lgkmcnt(0)')
    srd(A, 8, 4, WS_SIZE)
    srd(A, 12, 36, wbytes)
    A('s_lshl_b32 s33, s32, 7')
    if Khalf: A('s_lshl_b32 s67, s68, 8')
    A('s_lshl_b32 s35, s31, 3\ns_lshl_b32 s41, s30, 1\ns_add_u32 s35, s35, s41')
    A('s_lshl_b32 s34, s32, 8')
    A('v_lshrrev_b32 v17, 4, v1\nv_lshlrev_b32 v17, 4, v17')
    A('v_lshlrev_b32 v16, 4, v1')

def k_wo(A, name):
    c = typeS_cfg('wo', 2048, 4096, WS_O) if S2 else typeB_cfg('wo', 4096, WS_O)
    gemmB_common(A, name, c, 'wo', 4096*2048, 3, 2048 if S2 else None)
    sW = 's67' if S2 else 's33'
    A('s_lshl_b32 s42, s35, 15\ns_lshl_b32 s43, s32, 11\ns_add_u32 s42, s42, s43')
    A(f's_add_u32 s43, s42, {WS_XF}')
    for tb in range(2):
        for j in range(2):
            A(f'buffer_load_dwordx4 v[{64+8*tb+4*j}:{67+8*tb+4*j}], v16, s[8:11], s43 offen offset:{j*1024}')
        if tb == 0: A('s_add_u32 s43, s43, 32768')
    LX = c.NS * c.stage_bytes
    modsum_issue(A, [2, 4], 6, 's34', 'v18', 112, 40)
    load_ptr(A, 58, 'w1')
    A('s_mul_hi_u32 s48, s2, 0x924924A')
    A('s_mul_i32 s49, s48, 28\ns_sub_u32 s49, s2, s49')
    A('s_lshl_b32 s47, s48, 9')
    A('s_min_u32 s47, s47, 3584')
    modsum_issue(A, [4, 3], 7, 's47', 'v19', 120, 40)
    emit_addr_setup(A, c, 'v1', 's30', sW, 's35')
    nafter, per = emit_prologue_loads(A, c)
    npro = len(c.pro_order)
    A('s_waitcnt lgkmcnt(0)')
    srd(A, 16, 58, 1024*7168)
    A(f's_cmp_ge_u32 s2, 224\ns_cbranch_scc1 {name}_nouv1')
    A(f's_mul_i32 s50, s48, {128*7168}\ns_lshl_b32 s51, s49, 8\ns_add_u32 s50, s50, s51')
    GS = GR(q=20, rg=21, off=22, t0=23, t1=24, t2=25, t3=26, rd=28, res=32, vec=224, w=192, acc=240, tmp=48, s0=52, s1=53, sx=54)
    gemv_issue(A, 16, 7168, 's50', 8, GS)
    A.label(name + '_nouv1')
    A(f's_waitcnt vmcnt({npro})')
    modsum_finish(A, [2, 4], 6, 112, 'v18', LX)
    modsum_finish(A, [4, 3], 7, 120, 'v19', LX + 1024)
    A('s_waitcnt lgkmcnt(0)\ns_barrier')
    A(f'v_add_u32 v18, {LX}, v17')
    for fb in range(4):
        A(f'ds_read_b128 v[{80+4*fb}:{83+4*fb}], v18 offset:{fb*64}')
        A(f'ds_read_b128 v[{96+4*fb}:{99+4*fb}], v18 offset:{256+fb*64}')
    A(f's_cmp_ge_u32 s2, 224\ns_cbranch_scc1 {name}_nouv2')
    gemv_compute(A, 2, 8, LX + 1024, LX + 2048, GS, stamps=False)
    A(f's_mul_i32 s50, s48, {2*3584*4}\ns_lshl_b32 s51, s49, 9\ns_add_u32 s50, s50, s51')
    A(f's_add_u32 s50, s50, {WS_UVP}')
    A('v_and_b32 v24, 127, v0\nv_lshlrev_b32 v24, 2, v24')
    A('v_lshrrev_b32 v25, 7, v0')
    A(f's_mov_b32 s52, {3584*4}')
    A('v_mul_lo_u32 v25, v25, s52')
    A('v_add_u32 v24, v24, v25')
    A('buffer_store_dword v32, v24, s[8:11], s50 offen')
    A.label(name + '_nouv2')
    A('s_waitcnt lgkmcnt(0)')
    for r in range(c.NFB*c.NTB*4): A(f'v_mov_b32 v{c.acc+r}, 0')
    stamp(A, 1)
    emit_loop(A, c, nafter)
    stamp(A, 2)
    if S2:
        exchange_send(A, name, c, WS_XB1, WS_FLG)
        exchange_recv(A, name, c)
    stamp(A, 3)
    A('s_nop 7')
    for tb in range(2):
        X = 224
        for fb in range(4):
            xr = 64 + 8*tb + 4*(fb // 2) + 2*(fb % 2)
            for h in range(2):
                unpack_lo(A, f'v{X+4*fb+2*h}', f'v{xr+h}'); unpack_hi(A, f'v{X+4*fb+2*h+1}', f'v{xr+h}')
            for r in range(4):
                A(f'v_fmac_f32 v{X+4*fb+r}, v{80+4*fb+r}, v{c.accbase(fb, tb)+r}')
        P = 240
        for q in range(8): A(f'v_cvt_pk_bf16_f32 v{P+q}, v{X+2*q}, v{X+2*q+1}')
        for q in range(8):
            unpack_lo(A, f'v{X+2*q}', f'v{P+q}'); unpack_hi(A, f'v{X+2*q+1}', f'v{P+q}')
        A(f's_add_u32 s43, s42, {WS_X1 + tb*32768}')
        for j in range(2):
            A(f'buffer_store_dwordx4 v[{P+4*j}:{P+4*j+3}], v16, s[8:11], s43 offen offset:{j*1024}')
        Y = 248
        for q in range(16): A(f'v_mul_f32 v{200+q}, v{X+q}, v{96+q}')
        for q in range(8): A(f'v_cvt_pk_bf16_f32 v{Y+q}, v{200+2*q}, v{200+2*q+1}')
        A(f's_add_u32 s43, s42, {WS_Y + tb*32768}')
        for j in range(2):
            A(f'buffer_store_dwordx4 v[{Y+4*j}:{Y+4*j+3}], v16, s[8:11], s43 offen offset:{j*1024}')
        S = 20 + 2*tb
        A(f'v_add_f32 v{S}, v{X}, v{X+1}')
        for q in range(2, 16): A(f'v_add_f32 v{S}, v{S}, v{X+q}')
        xsum_rows(A, [f'v{S}'], ['v44'])
        A(f'v_mul_f32 v{S}, {hexf(1/64)}, v{S}')
        for q in range(16): A(f'v_sub_f32 v{X+q}, v{X+q}, v{S}')
        A(f'v_mul_f32 v{S+1}, v{X}, v{X}')
        for q in range(1, 16): A(f'v_fmac_f32 v{S+1}, v{X+q}, v{X+q}')
        xsum_rows(A, [f'v{S+1}'], ['v44'])
    A('v_lshlrev_b32 v45, 7, v1')
    A('s_lshl_b32 s40, s35, 11\ns_lshl_b32 s41, s32, 3\ns_add_u32 s40, s40, s41')
    A(f's_add_u32 s40, s40, {WS_ST}')
    A('v_cmp_gt_u32 vcc, 16, v1')
    A('s_and_saveexec_b64 s[44:45], vcc')
    A('buffer_store_dwordx2 v[20:21], v45, s[8:11], s40 offen')
    A('buffer_store_dwordx2 v[22:23], v45, s[8:11], s40 offen offset:2048')
    A('s_mov_b64 exec, s[44:45]')
    stamp(A, 5); stamp_flush(A, 3, 6)
    A.label(name + '_end')
    A('s_endpgm')
    return (name, 256, 256, 102)

def k_w2(A, name):
    c = typeS_cfg('w2', 1792, 3584, WS_H1) if S2 else typeB_cfg('w2', 3584, WS_H1)
    gemmB_common(A, name, c, 'w2', 3584*2048, 5, 1792 if S2 else None)
    sW = 's67' if S2 else 's33'
    srd(A, 16, 38, 2048*2048)
    A('s_lshl_b32 s42, s35, 15\ns_lshl_b32 s43, s32, 11\ns_add_u32 s42, s42, s43')
    A(f's_add_u32 s43, s42, {WS_X1}')
    for tb in range(2):
        for j in range(2):
            A(f'buffer_load_dwordx4 v[{64+8*tb+4*j}:{67+8*tb+4*j}], v16, s[8:11], s43 offen offset:{j*1024}')
        if tb == 0: A('s_add_u32 s43, s43, 32768')
    modsum_issue(A, [5], 6, 's34', 'v18', 112, 40)
    load_stats(A, 's35', 2, 96, 'v46')
    emit_addr_setup(A, c, 'v1', 's30', sW, 's35')
    nafter, per = emit_prologue_loads(A, c)
    A(f's_waitcnt vmcnt({len(c.pro_order)})')
    LX = c.NS * c.stage_bytes
    modsum_finish(A, [5], 6, 112, 'v18', LX)
    A('s_waitcnt lgkmcnt(0)\ns_barrier')
    A(f'v_add_u32 v18, {LX}, v17')
    for fb in range(4):
        A(f'ds_read_b128 v[{80+4*fb}:{83+4*fb}], v18 offset:{fb*64}')
    for r in range(c.NFB*c.NTB*4): A(f'v_mov_b32 v{c.acc+r}, 0')
    stamp(A, 1)
    emit_loop(A, c, nafter)
    stamp(A, 2)
    if S2:
        exchange_send(A, name, c, WS_XB1 + 8192, WS_FLG + 1024*128)
        exchange_recv(A, name, c)
    stamp(A, 3)
    finish_stats(A, 2, 96, 20, 22, 44)
    for tb in range(2): A(f'v_rcp_f32 v{22+tb}, v{22+tb}')
    A('v_and_b32 v24, 15, v1\nv_lshlrev_b32 v24, 11, v24')
    A('v_bfe_u32 v25, v1, 4, 1\nv_lshl_add_u32 v24, v25, 5, v24')
    A('v_lshrrev_b32 v25, 5, v1\nv_lshl_add_u32 v24, v25, 4, v24')
    A('s_lshl_b32 s43, s35, 15\ns_add_u32 s43, s43, s33')
    for tb in range(2):
        X = 224
        for fb in range(4):
            xr = 64 + 8*tb + 4*(fb // 2) + 2*(fb % 2)
            for r in range(4): A(f'v_mul_f32 v{c.accbase(fb,tb)+r}, v{c.accbase(fb,tb)+r}, v{22+tb}')
            for h in range(2):
                unpack_lo(A, f'v{X+4*fb+2*h}', f'v{xr+h}'); unpack_hi(A, f'v{X+4*fb+2*h+1}', f'v{xr+h}')
            for r in range(4):
                A(f'v_fmac_f32 v{X+4*fb+r}, v{80+4*fb+r}, v{c.accbase(fb, tb)+r}')
        P = 240 + 8*tb
        for q in range(8): A(f'v_cvt_pk_bf16_f32 v{P+q}, v{X+2*q}, v{X+2*q+1}')
        for j in range(2):
            A(f'v_permlane16_swap_b32 v{P+4*j}, v{P+4*j+2}')
            A(f'v_permlane16_swap_b32 v{P+4*j+1}, v{P+4*j+3}')
        for j in range(2):
            A(f'buffer_store_dwordx4 v[{P+4*j}:{P+4*j+3}], v24, s[16:19], s43 offen offset:{j*64}')
        if tb == 0: A('s_add_u32 s43, s43, 32768')
    stamp(A, 5); stamp_flush(A, 5, 6)
    A.label(name + '_end')
    A('s_endpgm')
    return (name, 256, 256, 102)

def k_w1(A, name):
    c = GemmCfg(name='w1', shape=16, NTB=4, R=4, wstride=7168, K=1024, act=0, act_kind='a', wf=64, wf_kind='a', acc=128,
                v_tr=4, v_act=12, v_dma=2, layout=1, order='sf', s_w=12, s_a=8, act_base=WS_Y)
    A(kernel_header(name))
    A(f's_cmp_ge_u32 s2, 224\ns_cbranch_scc1 {name}_end')
    stamp_begin(A)
    load_ptr(A, 4, 'ws'); load_ptr(A, 36, 'w1')
    lane_wave(A)
    A('s_and_b32 s31, s2, 1\ns_lshl_b32 s31, s31, 2\ns_bfe_u32 s33, s2, 0x20003\ns_add_u32 s31, s31, s33')
    A('s_bfe_u32 s32, s2, 0x20001\ns_mul_i32 s32, s32, 7\ns_lshr_b32 s33, s2, 5\ns_add_u32 s32, s32, s33')
    A('s_waitcnt lgkmcnt(0)')
    srd(A, 8, 4, WS_SIZE)
    srd(A, 12, 36, 1024*7168)
    A('s_lshl_b32 s33, s32, 8')
    A('s_lshl_b32 s35, s31, 4\ns_lshl_b32 s38, s30, 2\ns_add_u32 s35, s35, s38')
    A('s_lshl_b32 s34, s32, 9')
    A('v_lshrrev_b32 v17, 4, v1\nv_lshlrev_b32 v17, 4, v17')
    A('v_lshlrev_b32 v16, 4, v1')
    load_stats(A, 's35', 4, 64, 'v46')
    A('v_and_b32 v18, 127, v0\nv_lshlrev_b32 v18, 2, v18')
    A('v_lshrrev_b32 v19, 7, v0')
    A(f's_mov_b32 s40, {3584*4}')
    A('v_mul_lo_u32 v19, v19, s40')
    A('v_add_u32 v18, v18, v19')
    A(f's_add_u32 s40, s34, {WS_UVP}')
    for sl in range(8):
        A(f'buffer_load_dword v{48+sl}, v18, s[8:11], s40 offen')
        if sl < 7: A(f's_add_u32 s40, s40, {2*3584*4}')
    VV = [48 + 4*fb if fb < 4 else 20 + 4*(fb-4) for fb in range(8)]
    emit_addr_setup(A, c, 'v1', 's30', 's33', 's35')
    nafter, per = emit_prologue_loads(A, c)
    A(f's_waitcnt vmcnt({len(c.pro_order)})')
    A('v_add_f32 v48, v48, v49\nv_add_f32 v50, v50, v51\nv_add_f32 v52, v52, v53\nv_add_f32 v54, v54, v55')
    A('v_add_f32 v48, v48, v50\nv_add_f32 v52, v52, v54\nv_add_f32 v48, v48, v52')
    A('v_lshlrev_b32 v18, 2, v0')
    A('ds_write_b32 v18, v48 offset:65535' if False else 'v_add_u32 v18, 65536, v18')
    A('ds_write_b32 v18, v48')
    A('s_waitcnt lgkmcnt(0)\ns_barrier')
    A('v_add_u32 v18, 65536, v17')
    for fb in range(8):
        A(f'ds_read_b128 v[{96+4*fb}:{99+4*fb}], v18 offset:{fb*64}')
        A(f'ds_read_b128 v[{VV[fb]}:{VV[fb]+3}], v18 offset:{512+fb*64}')
    finish_stats(A, 4, 64, 36, 40, 44)
    A('s_waitcnt lgkmcnt(0)')
    for fb in range(8):
        for tb in range(4):
            for r in range(4):
                d = c.accbase(fb, tb) + r
                A(f'v_mul_f32 v{d}, v{VV[fb]+r}, v{40+tb}')
                A(f'v_fma_f32 v{d}, -v{36+tb}, v{96+4*fb+r}, v{d}')
    stamp(A, 1)
    emit_loop(A, c, nafter)
    stamp(A, 2)
    A('s_nop 7')
    A(f's_mul_i32 s42, s35, {112*1024}')
    A('s_lshl_b32 s43, s32, 12\ns_add_u32 s42, s42, s43')
    A(f's_add_u32 s42, s42, {WS_H1}')
    cnt = 0
    for tb in range(4):
        for j in range(4):
            d = 24 + 4*(cnt % 4); cnt += 1
            b0, b1 = c.accbase(2*j, tb), c.accbase(2*j+1, tb)
            A(f'v_cvt_pk_bf16_f32 v{d}, v{b0}, v{b0+1}\nv_cvt_pk_bf16_f32 v{d+1}, v{b0+2}, v{b0+3}')
            A(f'v_cvt_pk_bf16_f32 v{d+2}, v{b1}, v{b1+1}\nv_cvt_pk_bf16_f32 v{d+3}, v{b1+2}, v{b1+3}')
            for q in range(4): A(f'v_pk_max_i16 v{d+q}, v{d+q}, 0')
            A(f'buffer_store_dwordx4 v[{d}:{d+3}], v16, s[8:11], s42 offen offset:{j*1024}')
        if tb < 3: A(f's_add_u32 s42, s42, {112*1024}')
    stamp(A, 5); stamp_flush(A, 4, 6)
    A.label(name + '_end')
    A('s_endpgm')
    return (name, 256, 128, 102)
```

```python
from common import *
from gemmlib import *
import common, k_attn, k_gemm
from k_attn import *
from k_gemm import typeS_cfg, exchange_send, exchange_recv, exchange_flag, load_stats, finish_stats
from k_prep import gemv_issue, gemv_compute, GR

S_BLK, S_HEAD, S_W = 100, 101, 81
LSC = 131072
FORCE_SLOW = False
ACT_SC1 = True
UVCNT = WS_CNT + 64*128

def wave0(A, body):
    lab = A.newlabel('w0')
    A(f's_cmp_eq_u32 s30, 0\ns_cbranch_scc0 {lab}')
    body()
    A.label(lab)

def cnt_addr(A, idx, s_index):
    A(f's_lshl_b32 s78, {s_index}, 7\ns_add_u32 s78, s78, {WS_CNT + idx*16*128}')

def sync_arrive(A, idx, s_index, nyoung, uv=False):
    if nyoung is not None: A(f's_waitcnt vmcnt({nyoung})')
    A('s_barrier')
    def body():
        cnt_addr(A, idx, s_index)
        A('v_mov_b32 v30, 1\nv_mov_b32 v31, 0')
        A('s_mov_b64 exec, 1')
        A('buffer_atomic_add v30, v31, s[8:11], s78 offen sc1')
        if uv:
            lab = A.newlabel('uva')
            A(f's_cmp_ge_u32 s2, 224\ns_cbranch_scc1 {lab}')
            A(f's_and_b32 s78, s2, 7\ns_lshl_b32 s78, s78, 7\ns_add_u32 s78, s78, {UVCNT}')
            A('buffer_atomic_add v30, v31, s[8:11], s78 offen sc1')
            A.label(lab)
        A('s_mov_b64 exec, -1')
    wave0(A, body)

SPOLL = False
def poll(A, s_addr, count):
    l = A.newlabel('pl'); d = A.newlabel('pd')
    A('s_mov_b32 s76, 0')
    if SPOLL:
        A(f's_add_u32 s74, s8, {s_addr}\ns_addc_u32 s75, s9, 0')
        A('s_and_b32 s75, s75, 0xffff')
    A.label(l)
    if SPOLL:
        A('s_load_dword s77, s[74:75], 0 glc')
        A('s_waitcnt lgkmcnt(0)')
    else:
        A(f'buffer_load_dword {SYNCV[0]}, {SYNCV[1]}, s[8:11], {s_addr} offen sc1')
        A('s_waitcnt vmcnt(0)')
        A(f'v_readfirstlane_b32 s77, {SYNCV[0]}')
    A('s_add_u32 s76, s76, 1')
    A(f's_cmp_ge_u32 s77, {count}')
    A(f's_cbranch_scc1 {d}')
    A('s_cmp_lt_u32 s76, 0x40000')
    A(f's_cbranch_scc1 {l}')
    A.label(d)

SYNCV = ['v30', 'v31']
def sync_wait(A, idx, s_index, count):
    def body():
        cnt_addr(A, idx, s_index)
        A(f'v_mov_b32 {SYNCV[1]}, 0')
        A('s_mov_b64 exec, 1')
        poll(A, 's78', count)
        A('s_mov_b64 exec, -1')
    wave0(A, body)
    A('s_barrier')

def uv_wait(A):
    def body():
        l = A.newlabel('pu'); d = A.newlabel('pud')
        A('s_mov_b64 exec, 0xff')
        A('v_lshlrev_b32 v31, 7, v1')
        A(f's_mov_b32 s78, {UVCNT}')
        A('s_mov_b32 s76, 0')
        A.label(l)
        A('buffer_load_dword v30, v31, s[8:11], s78 offen sc1')
        A('s_waitcnt vmcnt(0)')
        A('v_cmp_le_u32 vcc, 28, v30')
        A('s_add_u32 s76, s76, 1')
        A('s_nop 1')
        A('s_cmp_eq_u32 vcc_lo, 0xff')
        A(f's_cbranch_scc1 {d}')
        A('s_cmp_lt_u32 s76, 0x40000')
        A(f's_cbranch_scc1 {l}')
        A.label(d)
        A('s_mov_b64 exec, -1')
    wave0(A, body)
    A('s_barrier')

MID_LATE = False
WQPF = False
WQ_FIRST = 0
def phase_ln(A, name, mid):
    W = f's{S_W}'
    load_ptr(A, 38, 'x')
    A('v_and_b32 v20, 7, v0')
    A('v_bfe_u32 v21, v0, 3, 2')
    A('v_lshrrev_b32 v22, 5, v0')
    A('v_lshlrev_b32 v23, 6, v22')
    A('v_lshl_add_u32 v23, v21, 3, v23')
    A('v_lshlrev_b32 v26, 11, v20')
    A('v_add_u32 v24, v26, v23')
    A(f's_lshl_b32 s20, {W}, 14')
    A('s_waitcnt lgkmcnt(0)')
    srd(A, 16, 38, 2048*2048)
    X0 = 144
    A('buffer_load_ushort v27, v26, s[16:19], s20 offen')
    for i in range(4):
        A(f'buffer_load_dwordx2 v[{X0+4*i}:{X0+1+4*i}], v24, s[16:19], s20 offen offset:{i*512}')
        A(f'buffer_load_dwordx2 v[{X0+2+4*i}:{X0+3+4*i}], v24, s[16:19], s20 offen offset:{i*512+32}')
    A('v_lshlrev_b32 v37, 5, v0')
    A(f's_mov_b32 s21, {WS_MODP}')
    for sl in range(8):
        A(f'buffer_load_dwordx4 v[{64+8*sl}:{67+8*sl}], v37, s[8:11], s21 offen')
        A(f'buffer_load_dwordx4 v[{68+8*sl}:{71+8*sl}], v37, s[8:11], s21 offen offset:16')
        if sl < 7: A(f's_add_u32 s21, s21, {6144*4}')
    nmid = 0 if MID_LATE else mid()
    A(f's_lshr_b32 s22, {W}, 1\ns_lshl_b32 s22, s22, 15')
    A(f's_and_b32 s23, {W}, 1\ns_lshl_b32 s23, s23, 7\ns_add_u32 s22, s22, s23')
    A('v_lshlrev_b32 v25, 10, v22')
    A('v_lshl_add_u32 v25, v21, 8, v25')
    A('v_lshl_add_u32 v25, v20, 4, v25')
    A(f's_mov_b32 s24, {hexf(CQ)}')
    X = 160
    stamp(A, 3)
    A(f's_waitcnt vmcnt({16+nmid})')
    stamp(A, 4)
    A('v_lshlrev_b32 v26, 16, v27')
    A('v_mov_b32 v27, v26')
    for j in range(16):
        unpack_lo(A, f'v{X+2*j}', f'v{X0+j}'); unpack_hi(A, f'v{X+1+2*j}', f'v{X0+j}')
    for j in range(16): A(f'v_pk_add_f32 v[{X+2*j}:{X+2*j+1}], v[{X+2*j}:{X+2*j+1}], v[26:27] neg_lo:[0,1] neg_hi:[0,1]')
    A(f'v_pk_add_f32 v[28:29], v[{X}:{X+1}], v[{X+2}:{X+3}]')
    A(f'v_pk_mul_f32 v[30:31], v[{X}:{X+1}], v[{X}:{X+1}]')
    A(f'v_pk_fma_f32 v[30:31], v[{X+2}:{X+3}], v[{X+2}:{X+3}], v[30:31]')
    for j in range(2, 16):
        A(f'v_pk_add_f32 v[28:29], v[28:29], v[{X+2*j}:{X+2*j+1}]')
        A(f'v_pk_fma_f32 v[30:31], v[{X+2*j}:{X+2*j+1}], v[{X+2*j}:{X+2*j+1}], v[30:31]')
    A('v_add_f32 v28, v28, v29\nv_add_f32 v29, v30, v31')
    for r in ('v28', 'v29'): A(f'v_add_f32_dpp {r}, {r}, {r} row_ror:8 row_mask:0xf bank_mask:0xf')
    xsum_rows(A, ['v28', 'v29'], ['v30', 'v31'])
    A('v_lshlrev_b32 v32, 3, v20')
    A(f'v_add_u32 v32, {LSC}, v32')
    A('s_lshl_b32 s25, s30, 6')
    A('v_add_u32 v33, s25, v32')
    A('v_cmp_gt_u32 vcc, 8, v1')
    A('s_and_saveexec_b64 s[60:61], vcc')
    A('ds_write_b64 v33, v[28:29]')
    A('s_mov_b64 exec, s[60:61]')
    stamp(A, 5)
    A(f's_waitcnt vmcnt({nmid})')
    stamp(A, 6)
    for (x, y) in ((0, 1), (2, 3), (4, 5), (6, 7), (0, 2), (4, 6), (0, 4)):
        for j in range(0, 8, 2):
            A(f'v_pk_add_f32 v[{64+8*x+j}:{65+8*x+j}], v[{64+8*x+j}:{65+8*x+j}], v[{64+8*y+j}:{65+8*y+j}]')
    for j in range(4): A(f'v_cvt_pk_bf16_f32 v{72+j}, v{64+2*j}, v{65+2*j}')
    for j in range(4):
        unpack_lo(A, f'v{64+2*j}', f'v{72+j}'); unpack_hi(A, f'v{65+2*j}', f'v{72+j}')
    A('s_cmp_lt_u32 s30, 2')
    A(f's_cbranch_scc1 {name}_nop1')
    for j in range(8): A(f'v_add_f32 v{64+j}, 1.0, v{64+j}')
    for j in range(4): A(f'v_cvt_pk_bf16_f32 v{72+j}, v{64+2*j}, v{65+2*j}')
    for j in range(4):
        unpack_lo(A, f'v{64+2*j}', f'v{72+j}'); unpack_hi(A, f'v{65+2*j}', f'v{72+j}')
    A.label(name + '_nop1')
    for j in range(8): A(f'v_mul_f32 v{64+j}, s24, v{64+j}')
    A(f'v_add_u32 v37, {LSC}, v37')
    A('ds_write_b128 v37, v[64:67] offset:1024')
    A('ds_write_b128 v37, v[68:71] offset:1040')
    A('s_waitcnt lgkmcnt(0)\ns_barrier')
    stamp(A, 7)
    for w in range(4): A(f'ds_read_b64 v[{40+2*w}:{41+2*w}], v32 offset:{64*w}')
    A('v_lshlrev_b32 v34, 1, v23')
    A(f'v_add_u32 v34, {LSC}, v34')
    for i in range(4):
        for sub in range(2):
            A(f'ds_read_b128 v[{64+8*i+4*sub}:{67+8*i+4*sub}], v34 offset:{1024 + i*1024 + sub*64}')
            A(f'ds_read_b128 v[{96+8*i+4*sub}:{99+8*i+4*sub}], v34 offset:{1024 + 4096 + i*1024 + sub*64}')
    A('s_waitcnt lgkmcnt(0)')
    A('v_pk_add_f32 v[40:41], v[40:41], v[42:43]\nv_pk_add_f32 v[44:45], v[44:45], v[46:47]\nv_pk_add_f32 v[40:41], v[40:41], v[44:45]')
    A(f'v_mul_f32 v40, {hexf(1/1024)}, v40')
    A(f'v_mul_f32 v41, {hexf(1/1024)}, v41')
    A('v_fma_f32 v41, -v40, v40, v41')
    A('v_max_f32 v41, 0, v41')
    A(f'v_add_f32 v41, {hexf(1e-5)}, v41')
    A('v_rsq_f32 v42, v41')
    A('s_nop 0')
    A('v_mul_f32 v44, -v40, v42' if False else 'v_mul_f32 v44, v40, v42')
    A('v_sub_f32 v44, 0, v44\nv_mov_b32 v45, v44\nv_mov_b32 v43, v42')
    for j in range(16):
        A(f'v_pk_fma_f32 v[{X+2*j}:{X+2*j+1}], v[{X+2*j}:{X+2*j+1}], v[42:43], v[44:45]')
    for j in range(16):
        A(f'v_pk_fma_f32 v[{X+2*j}:{X+2*j+1}], v[{X+2*j}:{X+2*j+1}], v[{96+2*j}:{97+2*j}], v[{64+2*j}:{65+2*j}]')
    for j in range(16):
        A(f'v_cvt_pk_bf16_f32 v{X0+j}, v{X+2*j}, v{X+1+2*j}')
    A(f's_add_u32 s23, s22, {WS_H}')
    for i in range(4):
        A(f'buffer_store_dwordx4 v[{X0+4*i}:{X0+3+4*i}], v25, s[8:11], s23 offen sc1')
        if i < 3: A('s_add_u32 s23, s23, 8192')
    if MID_LATE: mid()

XHAT = False
def phase_ln2(A, name, mid):
    W = f's{S_W}'
    A('v_and_b32 v20, 7, v0')
    A('v_bfe_u32 v21, v0, 3, 2')
    A('v_lshrrev_b32 v22, 5, v0')
    A('v_lshlrev_b32 v25, 10, v22')
    A('v_lshl_add_u32 v25, v21, 8, v25')
    A('v_lshl_add_u32 v25, v20, 4, v25')
    A(f's_lshr_b32 s22, {W}, 1\ns_lshl_b32 s22, s22, 15')
    A(f's_and_b32 s23, {W}, 1\ns_lshl_b32 s23, s23, 7\ns_add_u32 s22, s22, s23')
    X0 = 144
    A('v_lshlrev_b32 v37, 5, v0')
    A(f's_mov_b32 s21, {WS_MODP}')
    for sl in range(8):
        A(f'buffer_load_dwordx4 v[{64+8*sl}:{67+8*sl}], v37, s[8:11], s21 offen')
        A(f'buffer_load_dwordx4 v[{68+8*sl}:{71+8*sl}], v37, s[8:11], s21 offen offset:16')
        if sl < 7: A(f's_add_u32 s21, s21, {6144*4}')
    A(f's_add_u32 s23, s22, {WS_XF}')
    for i in range(4):
        A(f'buffer_load_dwordx4 v[{X0+4*i}:{X0+3+4*i}], v25, s[8:11], s23 offen')
        if i < 3: A('s_add_u32 s23, s23, 8192')
    nmid = mid()
    A(f's_mov_b32 s24, {hexf(CQ)}')
    A('v_lshlrev_b32 v23, 6, v22')
    A('v_lshl_add_u32 v23, v21, 3, v23')
    A(f's_waitcnt vmcnt({4+nmid})')
    for (x, y) in ((0, 1), (2, 3), (4, 5), (6, 7), (0, 2), (4, 6), (0, 4)):
        for j in range(0, 8, 2):
            A(f'v_pk_add_f32 v[{64+8*x+j}:{65+8*x+j}], v[{64+8*x+j}:{65+8*x+j}], v[{64+8*y+j}:{65+8*y+j}]')
    for j in range(4): A(f'v_cvt_pk_bf16_f32 v{72+j}, v{64+2*j}, v{65+2*j}')
    for j in range(4):
        unpack_lo(A, f'v{64+2*j}', f'v{72+j}'); unpack_hi(A, f'v{65+2*j}', f'v{72+j}')
    A('s_cmp_lt_u32 s30, 2')
    A(f's_cbranch_scc1 {name}_nop1')
    for j in range(8): A(f'v_add_f32 v{64+j}, 1.0, v{64+j}')
    for j in range(4): A(f'v_cvt_pk_bf16_f32 v{72+j}, v{64+2*j}, v{65+2*j}')
    for j in range(4):
        unpack_lo(A, f'v{64+2*j}', f'v{72+j}'); unpack_hi(A, f'v{65+2*j}', f'v{72+j}')
    A.label(name + '_nop1')
    for j in range(8): A(f'v_mul_f32 v{64+j}, s24, v{64+j}')
    A(f'v_add_u32 v37, {LSC}, v37')
    A('ds_write_b128 v37, v[64:67] offset:1024')
    A('ds_write_b128 v37, v[68:71] offset:1040')
    A('s_waitcnt lgkmcnt(0)\ns_barrier')
    stamp(A, 7)
    A('v_lshlrev_b32 v34, 1, v23')
    A(f'v_add_u32 v34, {LSC}, v34')
    for i in range(4):
        for sub in range(2):
            A(f'ds_read_b128 v[{64+8*i+4*sub}:{67+8*i+4*sub}], v34 offset:{1024 + i*1024 + sub*64}')
            A(f'ds_read_b128 v[{96+8*i+4*sub}:{99+8*i+4*sub}], v34 offset:{1024 + 4096 + i*1024 + sub*64}')
    X = 160
    A(f's_waitcnt vmcnt({nmid})')
    for j in range(16):
        unpack_lo(A, f'v{X+2*j}', f'v{X0+j}'); unpack_hi(A, f'v{X+1+2*j}', f'v{X0+j}')
    A('s_waitcnt lgkmcnt(0)')
    for j in range(16):
        A(f'v_pk_fma_f32 v[{X+2*j}:{X+2*j+1}], v[{X+2*j}:{X+2*j+1}], v[{96+2*j}:{97+2*j}], v[{64+2*j}:{65+2*j}]')
    for j in range(16):
        A(f'v_cvt_pk_bf16_f32 v{X0+j}, v{X+2*j}, v{X+1+2*j}')
    A(f's_add_u32 s23, s22, {WS_H}')
    for i in range(4):
        A(f'buffer_store_dwordx4 v[{X0+4*i}:{X0+3+4*i}], v25, s[8:11], s23 offen sc1')
        if i < 3: A('s_add_u32 s23, s23, 8192')

LAY_A = 5
QDEEP = False
QD_EARLY = True
QD_TOUCH = True
def cfgA(name, wstride, act_base, deep=False, **kw):
    if deep: kw.update(NS=8, v_tr_hi=48)
    return GemmCfg(name=name, shape=16, NTB=4, R=8 if deep else 4, wstride=wstride, K=1024, act=0, act_kind='a', wf=128 if deep else 64, wf_kind='a', acc=128,
                   v_tr=4, v_act=12, v_dma=2, layout=LAY_A, order='sf', s_w=12, s_a=8, act_base=act_base, act_sc1=ACT_SC1, **kw)

def k_main(A, name):
    A(kernel_header(name))
    A(f's_cmp_ge_u32 s2, 256\ns_cbranch_scc1 {name}_end')
    stamp_begin(A)
    load_ptr(A, 4, 'ws'); load_ptr(A, 36, 'wq')
    lane_wave(A)
    BLK, HEAD, W = f's{S_BLK}', f's{S_HEAD}', f's{S_W}'
    A(f's_and_b32 s31, s2, 1\ns_lshl_b32 s31, s31, 2\ns_bfe_u32 s33, s2, 0x20003\ns_add_u32 {BLK}, s31, s33')
    A(f's_bfe_u32 s34, s2, 0x20001\ns_lshl_b32 s32, s34, 3\ns_lshr_b32 s33, s2, 5\ns_add_u32 {HEAD}, s32, s33')
    A(f's_lshl_b32 {W}, {BLK}, 5\ns_add_u32 {W}, {W}, {HEAD}')
    A('s_waitcnt lgkmcnt(0)')
    srd(A, 8, 4, WS_SIZE)
    srd(A, 12, 36, 1024*8192)
    if WQ_FIRST:
        A('v_lshlrev_b32 v48, 7, v1')
        A(f's_lshl_b32 s62, s2, 2\ns_add_u32 s62, s62, s30\ns_mul_i32 s62, s62, {WQ_FIRST*128}\ns_add_u32 s62, s62, {(64-WQ_FIRST)*128*1024}')
        if WQ_FIRST < 64:
            A(f's_mov_b64 exec, {hex((1 << WQ_FIRST) - 1)}' if WQ_FIRST <= 31 else f's_mov_b32 exec_hi, {hex((1 << (WQ_FIRST-32)) - 1)}')
        A('buffer_load_dword v49, v48, s[12:15], s62 offen')
        A('s_mov_b64 exec, -1')
    cq = cfgA('qp', 8192, WS_H, deep=QDEEP)
    def mid():
        A(f's_lshl_b32 s33, {HEAD}, 8')
        emit_addr_setup(A, cq, 'v1', 's30', 's33', None)
        return emit_w_prologue(A, cq, 0, 3) if QDEEP else emit_w_prologue(A, cq)
    (phase_ln2 if XHAT else phase_ln)(A, name, mid)
    stamp(A, 1)
    stamp_flush2(A, 5, 8, 48, 's2')
    npf = 0
    if WQPF:
        lab = A.newlabel('pf')
        A(f's_cmp_eq_u32 s30, 0\ns_cbranch_scc1 {lab}')
        A('s_waitcnt vmcnt(0)')
        A('v_lshlrev_b32 v48, 7, v1')
        A(f's_mul_i32 s62, s2, 32768\ns_sub_u32 s63, s30, 1\ns_mul_i32 s63, s63, {8192+4096}\ns_add_u32 s62, s62, s63')
        A('buffer_load_dword v49, v48, s[12:15], s62 offen')
        A('s_add_u32 s62, s62, 8192')
        A('v_cmp_gt_u32 vcc, 32, v1')
        A('s_and_saveexec_b64 s[60:61], vcc')
        A('buffer_load_dword v50, v48, s[12:15], s62 offen')
        A('s_mov_b64 exec, s[60:61]')
        A(f's_branch {lab}_a')
        A.label(lab)
        A('s_waitcnt vmcnt(0)')
        A.label(lab + '_a')
        sync_arrive(A, 0, BLK, None)
    elif QDEEP and QD_EARLY:
        nl = emit_w_prologue(A, cq, 3)
        sync_arrive(A, 0, BLK, nl)
    else:
        sync_arrive(A, 0, BLK, 0)
    stamp(A, 2)
    A(f's_lshl_b32 s35, {BLK}, 4\ns_lshl_b32 s38, s30, 2\ns_add_u32 s35, s35, s38')
    emit_act_addr(A, cq, 'v1', 's35')
    A(f'v_lshlrev_b32 v{V_L16}, 4, v1')
    A(f's_lshr_b32 s34, {HEAD}, 3')
    A(f's_lshl_b32 s{S_KVOFF}, s34, 18\ns_add_u32 s{S_KVOFF}, s{S_KVOFF}, {WS_KV}')
    A(f's_lshl_b32 s{S_WK}, s30, 11')
    A(f's_add_u32 s{S_KVOFF}, s{S_KVOFF}, s{S_WK}')
    A(f's_add_u32 s{S_KB}, s{S_WK}, {LDS_K}\ns_add_u32 s{S_VB}, s{S_WK}, {LDS_V}')
    for r in range(128): A(f'v_mov_b32 v{cq.acc+r}, 0')
    sync_wait(A, 0, BLK, 32)
    stamp(A, 3)
    nact = emit_act_prologue(A, cq)
    if QDEEP:
        nx = 0 if QD_EARLY else emit_w_prologue(A, cq, 3)
        if QD_TOUCH:
            A('v_lshlrev_b32 v56, 7, v1')
            A(f's_lshl_b32 s62, s2, 2\ns_add_u32 s62, s62, s30\ns_mul_i32 s62, s62, {36*128}\ns_add_u32 s62, s62, {448*8192}')
            A('s_mov_b32 exec_hi, 0xf')
            A('buffer_load_dword v57, v56, s[12:15], s62 offen')
            A('s_mov_b32 exec_hi, -1')
            cq.pro_order += ['buffer_x lds']; nx += 1
        if QD_EARLY: A(f's_add_u32 m0, s{cq.s_m0}, {(cq.NS-1)*cq.stage_bytes}')
    else:
        for which, tile in (('k', 0), ('k', 1), ('v', 0), ('k', 2)):
            emit_kv_dma_static(A, which, tile)
        cq.pro_order += ['buffer_x lds'] * 8
        nx = 8
        A(f's_add_u32 m0, s{cq.s_m0}, {(cq.NS-1)*cq.stage_bytes}')
    emit_loop(A, cq, nact + nx)
    stamp(A, 4)
    A(f's_mov_b32 s32, {HEAD}')
    attention(A, name, cq)
    stamp(A, 7)
    stamp_flush2(A, 1, 8, 40, 's2')
    co = typeS_cfg('wo', 2048, 4096, WS_O); co.act_sc1 = True; co.v_tr_hi = 216
    mapS2(A, 2048)
    load_ptr(A, 36, 'wo'); load_ptr(A, 58, 'w1'); load_ptr(A, 38, 'x')
    A('s_waitcnt lgkmcnt(0)')
    srd(A, 12, 36, 4096*2048)
    if co.NS > 4: A('s_barrier')
    emit_addr_setup(A, co, 'v1', 's30', 's67', None)
    nw = emit_w_prologue(A, co)
    nuv = uv_issue(A)
    A(f's_lshl_b32 s40, {BLK}, 1\ns_lshr_b32 s41, {HEAD}, 4\ns_add_u32 s40, s40, s41')
    sync_arrive(A, 1, 's40', nw + nuv)
    stamp(A, 0)
    uv_compute(A, name)
    phase_wo(A, name, co)
    stamp_flush2(A, 2, 8, 40, 's2')
    c1 = cfgA('w1', 7168, WS_Y)
    load_ptr(A, 36, 'w1')
    A('s_lshr_b32 s40, s31, 1')
    A('s_bfe_u32 s32, s2, 0x20001\ns_mul_i32 s32, s32, 7\ns_lshr_b32 s33, s2, 5\ns_add_u32 s32, s32, s33')
    A('s_min_u32 s32, s32, 27')
    A('s_lshl_b32 s33, s32, 8')
    A('s_waitcnt lgkmcnt(0)')
    srd(A, 12, 36, 1024*7168)
    emit_addr_setup(A, c1, 'v1', 's30', 's33', None)
    nw = emit_w_prologue(A, c1)
    sync_arrive(A, 2, 's40', nw)
    stamp(A, 0)
    phase_w1(A, name, c1)
    stamp_flush2(A, 3, 8, 40, 's2')
    c2 = typeS_cfg('w2', 1792, 3584, WS_H1); c2.act_sc1 = True; c2.v_tr_hi = 216
    A(f's_cmp_ge_u32 s32, 14\ns_cselect_b32 s41, 1, 0\ns_lshl_b32 s46, {BLK}, 1\ns_add_u32 s46, s46, s41')
    mapS2(A, 1792)
    load_ptr(A, 36, 'w2'); load_ptr(A, 38, 'out')
    A('s_waitcnt lgkmcnt(0)')
    srd(A, 12, 36, 3584*2048)
    srd(A, 16, 38, 2048*2048)
    emit_addr_setup(A, c2, 'v1', 's30', 's67', None)
    nw = emit_w_prologue(A, c2)
    lab = A.newlabel('noarr')
    A(f's_cmp_ge_u32 s2, 224\ns_cbranch_scc1 {lab}')
    sync_arrive(A, 3, 's46', nw)
    A.label(lab)
    stamp(A, 0)
    phase_w2(A, name, c2)
    stamp_flush2(A, 4, 8, 40, 's2')
    A.label(name + '_end')
    A('s_endpgm')
    return (name, 256, 256, 102)

def mapS2(A, Khalf):
    A('s_and_b32 s69, s2, 1')
    A('s_bfe_u32 s31, s2, 0x20001\ns_lshl_b32 s31, s31, 2\ns_bfe_u32 s33, s2, 0x20003\ns_add_u32 s31, s31, s33')
    A('s_lshr_b32 s68, s2, 5')
    A('s_lshl_b32 s32, s68, 1\ns_add_u32 s32, s32, s69')
    A('s_lshl_b32 s70, s69, 2')
    A(f's_mul_i32 s71, s69, {Khalf*2048}')
    A(f's_mul_i32 s72, s69, {(Khalf//32)*1024}')
    A('s_lshl_b32 s33, s32, 7')
    A('s_lshl_b32 s67, s68, 8')
    A('s_lshl_b32 s35, s31, 3\ns_lshl_b32 s41, s30, 1\ns_add_u32 s35, s35, s41')
    A('s_lshl_b32 s34, s32, 8')
    A('v_lshrrev_b32 v17, 4, v1\nv_lshlrev_b32 v17, 4, v17')
    A('v_lshlrev_b32 v16, 4, v1')

def attention(A, name, c):
    for tb in range(4):
        for ks in range(4):
            b0, b1 = c.accbase(2*ks, tb), c.accbase(2*ks+1, tb)
            q = V_Q + (tb*4+ks)*4
            A(f'v_cvt_pk_bf16_f32 v{q}, v{b0}, v{b0+1}\nv_cvt_pk_bf16_f32 v{q+1}, v{b0+2}, v{b0+3}')
            A(f'v_cvt_pk_bf16_f32 v{q+2}, v{b1}, v{b1+1}\nv_cvt_pk_bf16_f32 v{q+3}, v{b1+2}, v{b1+3}')
    load_ptr(A, 62, 'wo'); load_ptr(A, 64, 'w2'); load_ptr(A, 66, 'w1')
    A('s_waitcnt vmcnt(0) lgkmcnt(0)')
    A('s_barrier')
    if QDEEP:
        for which, tile in (('k', 0), ('k', 1), ('v', 0), ('k', 2)):
            emit_kv_dma_static(A, which, tile)
    for r in range(128): A(f'v_accvgpr_write_b32 a{A_O+r}, 0')
    for tb in range(4): A(f'v_mov_b32 v{V_L+tb}, 0')
    if k_attn.ROWSUM_MFMA:
        for r in range(16): A(f'v_accvgpr_write_b32 a{A_LS+r}, 0')
        A('v_mov_b32 v40, 0x3f803f80')
        for r in range(4): A(f'v_accvgpr_write_b32 a{A_1+r}, v40')
    W = 's2'
    if k_attn.PREFETCH:
        A('v_and_b32 v40, 3, v1')
        A('s_lshl_b32 s72, s30, 2')
        A('v_add_u32 v40, s72, v40')
        A(f'v_mov_b32 v{V_PFI+1}, 0')
        def grp(mask, ptr, off_instrs, inc):
            A(f's_mov_b64 exec, {hex(mask)}')
            for i_ in off_instrs: A(i_)
            A(f'v_mov_b32 v{V_PFA+1}, s{ptr+1}')
            A(f'v_add_co_u32 v{V_PFA}, vcc, s{ptr}, v41')
            A(f'v_addc_co_u32 v{V_PFA+1}, vcc, 0, v{V_PFA+1}, vcc')
            A(f'v_mov_b32 v{V_PFI}, {inc}')
        grp(0xf00f, 62, [f's_lshl_b32 s73, {W}, 15', 'v_lshl_add_u32 v41, v40, 7, s73'], 2048)
        grp(0x00f0, 64, [f's_mul_i32 s73, {W}, 28672', 'v_mul_u32_u24 v41, 112, v40', 'v_add_u32 v41, s73, v41'], 1792)
        grp(0x0f00, 66, ['v_mul_u32_u24 v41, 112, v40', 'v_add_u32 v41, s73, v41'], 1792)
        A('s_mov_b64 exec, -1')
    A(f'v_add_u32 v{V_LB}, {LDS_K}, v{V_L16}')
    A(f'v_mov_b32 v{V_KA}, v{V_LB}')
    for tb in range(4):
        for r in range(4): A(f'v_mov_b32 v{V_NEGM+tb*4+r}, 0')
    A(f's_mov_b32 s{S_IT}, -1')
    A(f's_mov_b32 s{S_RING}, {3*8192}\ns_mov_b32 s{S_RING2}, {1*8192}')
    A(f's_add_u32 s{S_GK}, s{S_KVOFF}, {2*16384}')
    A(f's_add_u32 s{S_GV}, s{S_KVOFF}, {8192}')
    if QDEEP:
        A('s_waitcnt vmcnt(0)')
        A('s_barrier')
    emit_iter(A, 1, True, False, False, first_reads_done=False)
    for tb in range(4):
        r0, r1 = sreg(0, 0, tb), sreg(0, 1, tb)
        m = 40 + tb
        A(f'v_max3_f32 v{m}, v{r0}, v{r0+1}, v{r0+2}')
        A(f'v_max3_f32 v{m}, v{m}, v{r0+3}, v{r1}')
        A(f'v_max3_f32 v{m}, v{m}, v{r1+1}, v{r1+2}')
        A(f'v_max_f32 v{m}, v{m}, v{r1+3}')
    xsum_rows(A, [f'v{40+tb}' for tb in range(4)], [f'v{44+tb}' for tb in range(4)], op='v_max_f32')
    for tb in range(4):
        for r in range(4): A(f'v_sub_f32 v{V_NEGM+tb*4+r}, 0, v{40+tb}')
        for kb in range(2):
            for r in range(4): A(f'v_sub_f32 v{sreg(0,kb,tb)+r}, v{sreg(0,kb,tb)+r}, v{40+tb}')
    stamp(A, 5)
    emit_iter(A, 0, True, True, False)
    lab = name + '_att'
    A.label(lab)
    emit_iter(A, 1, True, True, True)
    emit_iter(A, 0, True, True, True)
    A(f's_cmp_lt_u32 s{S_IT}, 15\ns_cbranch_scc1 {lab}')
    A('s_waitcnt lgkmcnt(0)')
    emit_iter(A, 1, False, True, True, ring=False, first_reads_done=False)
    A(f's_waitcnt vmcnt({2*nvm()-4})')
    A('s_barrier')
    A(f'v_add_u32 v{V_VA}, {LDS_V + 3*8192}, v{V_L16}')
    emit_iter(A, 0, False, False, True, ring=False, first_reads_done=False)
    stamp(A, 6)
    if k_attn.ROWSUM_MFMA:
        A('s_nop 7')
        for tb in range(4): A(f'v_accvgpr_read_b32 v{V_L+tb}, a{A_LS+4*tb}')
    else:
        xsum_rows(A, [f'v{V_L+tb}' for tb in range(4)], [f'v{44+tb}' for tb in range(4)])
    A(f's_mov_b32 s{S_T0}, {hexf(2.0**100)}')
    A(f'v_add_f32 v41, v{V_L}, v{V_L+1}\nv_add_f32 v42, v{V_L+2}, v{V_L+3}\nv_add_f32 v41, v41, v42')
    A(f'v_cmp_nle_f32 vcc, v41, s{S_T0}')
    A('s_nop 4')
    A(f's_cbranch_vccz {name}_norm')
    k_attn.emit_slow(A, name)
    A.label(name + '_norm')
    for tb in range(4): A(f'v_rcp_f32 v{V_L+tb}, v{V_L+tb}')
    A(f's_lshl_b32 s{S_T0}, s35, 17')
    A(f's_lshl_b32 s{S_T1}, s32, 12')
    A(f's_add_u32 s{S_T0}, s{S_T0}, s{S_T1}\ns_add_u32 s{S_T0}, s{S_T0}, {WS_O}')
    cnt = 0
    for tb in range(4):
        for j in range(4):
            t = 128 + 8*(cnt % 4); d = 160 + 4*(cnt % 4); cnt += 1
            for h in range(2):
                for r in range(4): A(f'v_accvgpr_read_b32 v{t+4*h+r}, a{oreg(2*j+h, tb)+r}')
            for q in range(8): A(f'v_mul_f32 v{t+q}, v{t+q}, v{V_L+tb}')
            for q in range(4): A(f'v_cvt_pk_bf16_f32 v{d+q}, v{t+2*q}, v{t+2*q+1}')
            A(f'buffer_store_dwordx4 v[{d}:{d+3}], v{V_L16}, s[8:11], s{S_T0} offen offset:{j*1024} sc1')
        if tb < 3: A(f's_add_u32 s{S_T0}, s{S_T0}, {1 << 17}')

def frag_loads(A, base, dst):
    A(f's_add_u32 s43, s42, {base}')
    for tb in range(2):
        for j in range(2):
            A(f'buffer_load_dwordx4 v[{dst+8*tb+4*j}:{dst+3+8*tb+4*j}], v16, s[8:11], s43 offen offset:{j*1024} sc1')
        if tb == 0: A('s_add_u32 s43, s43, 32768')

GS = GR(q=20, rg=21, off=22, t0=23, t1=24, t2=25, t3=26, rd=28, res=27, vec=224, w=32, acc=240, tmp=208, s0=52, s1=53, sx=54)
def uv_issue(A):
    A('s_mul_hi_u32 s48, s2, 0x924924A')
    A('s_mul_i32 s49, s48, 28\ns_sub_u32 s49, s2, s49')
    A('s_lshl_b32 s47, s48, 9\ns_min_u32 s47, s47, 3584')
    modsum_issue(A, [4, 3], 7, 's47', 'v19', 120, 40)
    srd(A, 16, 58, 1024*7168)
    A('s_min_u32 s50, s48, 7')
    A(f's_mul_i32 s50, s50, {128*7168}\ns_lshl_b32 s51, s49, 8\ns_add_u32 s50, s50, s51')
    gemv_issue(A, 16, 7168, 's50', 8, GS)
    return 16

def uv_compute(A, name):
    A(f's_cmp_ge_u32 s2, 224\ns_cbranch_scc1 {name}_nouv')
    A('s_waitcnt vmcnt(8)')
    modsum_finish(A, [4, 3], 7, 120, 'v19', LSC + 1024)
    A('s_waitcnt lgkmcnt(0)\ns_barrier')
    gemv_compute(A, 2, 8, LSC + 1024, LSC + 2048, GS, stamps=False, nyoung=0)
    A(f's_mul_i32 s50, s48, {2*3584*4}\ns_lshl_b32 s51, s49, 9\ns_add_u32 s50, s50, s51')
    A(f's_add_u32 s50, s50, {WS_UVP}')
    A('v_and_b32 v24, 127, v0\nv_lshlrev_b32 v24, 2, v24')
    A('v_lshrrev_b32 v25, 7, v0')
    A(f's_mov_b32 s52, {3584*4}')
    A('v_mul_lo_u32 v25, v25, s52')
    A('v_add_u32 v24, v24, v25')
    A('buffer_store_dword v27, v24, s[8:11], s50 offen sc1')
    A(f's_branch {name}_nouv2')
    A.label(name + '_nouv')
    A('s_waitcnt vmcnt(0)')
    A.label(name + '_nouv2')

X1R = 64
def x_loads(A):
    srd(A, 44, 38, 2048*2048)
    A('v_and_b32 v28, 15, v1\nv_lshlrev_b32 v28, 11, v28')
    A('v_lshrrev_b32 v29, 4, v1\nv_lshl_add_u32 v28, v29, 3, v28')
    A('s_lshl_b32 s43, s35, 15\ns_add_u32 s43, s43, s33')
    for tb in range(2):
        for fb in range(4):
            r = X1R + 8*tb + 2*fb
            A(f'buffer_load_dwordx2 v[{r}:{r+1}], v28, s[44:47], s43 offen offset:{fb*32}')
        if tb == 0: A('s_add_u32 s43, s43, 32768')

def phase_wo(A, name, c):
    W = 's2'
    emit_act_addr(A, c, 'v1', 's35')
    for r in range(64): A(f'v_mov_b32 v{c.acc+r}, 0')
    A('s_lshr_b32 s40, s31, 1\ns_lshl_b32 s40, s40, 1\ns_add_u32 s40, s40, s69')
    sync_wait(A, 1, 's40', 16)
    stamp(A, 1)
    nact = emit_act_prologue(A, c)
    A(f's_add_u32 m0, s{c.s_m0}, {(c.NS-1)*c.stage_bytes}')
    emit_loop(A, c, nact)
    stamp(A, 2)
    def uvsig():
        lab = A.newlabel('uva')
        A(f's_cmp_ge_u32 s2, 224\ns_cbranch_scc1 {lab}')
        A(f's_and_b32 s78, s2, 7\ns_lshl_b32 s78, s78, 7\ns_add_u32 s78, s78, {UVCNT}')
        A('v_mov_b32 v30, 1\nv_mov_b32 v31, 0')
        A('s_mov_b64 exec, 1')
        A('buffer_atomic_add v30, v31, s[8:11], s78 offen sc1')
        A('s_mov_b64 exec, -1')
        A.label(lab)
    wave0(A, uvsig)
    exchange_send(A, name + '_wo', c, WS_XB1, WS_FLG)
    A('s_lshl_b32 s42, s35, 15\ns_lshl_b32 s43, s32, 11\ns_add_u32 s42, s42, s43')
    modsum_issue(A, [2, 4], 6, 's34', 'v18', 112, 40)
    x_loads(A)
    exchange_flag(A, 16)
    A('s_waitcnt vmcnt(9)')
    modsum_finish(A, [2, 4], 6, 112, 'v18', LSC)
    A('s_waitcnt lgkmcnt(0)\ns_barrier')
    A(f'v_add_u32 v18, {LSC}, v17')
    for fb in range(4):
        A(f'ds_read_b128 v[{80+4*fb}:{83+4*fb}], v18 offset:{fb*64}')
        A(f'ds_read_b128 v[{96+4*fb}:{99+4*fb}], v18 offset:{256+fb*64}')
    A('s_waitcnt lgkmcnt(0)')
    exchange_recv(A, name + '_wo', c, flag=False)
    stamp(A, 3)
    for tb in range(2):
        X = 224
        for fb in range(4):
            xr = 64 + 8*tb + 4*(fb // 2) + 2*(fb % 2)
            for h in range(2):
                unpack_lo(A, f'v{X+4*fb+2*h}', f'v{xr+h}'); unpack_hi(A, f'v{X+4*fb+2*h+1}', f'v{xr+h}')
            for r in range(4):
                A(f'v_fmac_f32 v{X+4*fb+r}, v{80+4*fb+r}, v{c.accbase(fb, tb)+r}')
        P = X1R + 8*tb
        for q in range(8): A(f'v_cvt_pk_bf16_f32 v{P+q}, v{X+2*q}, v{X+2*q+1}')
        for q in range(8):
            unpack_lo(A, f'v{X+2*q}', f'v{P+q}'); unpack_hi(A, f'v{X+2*q+1}', f'v{P+q}')
        Y = 248
        for q in range(16): A(f'v_mul_f32 v{200+q}, v{X+q}, v{96+q}')
        for q in range(8): A(f'v_cvt_pk_bf16_f32 v{Y+q}, v{200+2*q}, v{200+2*q+1}')
        A(f's_add_u32 s43, s42, {WS_Y + tb*32768}')
        for j in range(2):
            A(f'buffer_store_dwordx4 v[{Y+4*j}:{Y+4*j+3}], v16, s[8:11], s43 offen offset:{j*1024} sc1')
        S = 20 + 2*tb
        A(f'v_add_f32 v{S}, v{X}, v{X+1}')
        for q in range(2, 16): A(f'v_add_f32 v{S}, v{S}, v{X+q}')
        xsum_rows(A, [f'v{S}'], ['v44'])
        A(f'v_mul_f32 v{S}, {hexf(1/64)}, v{S}')
        for q in range(16): A(f'v_sub_f32 v{X+q}, v{X+q}, v{S}')
        A(f'v_mul_f32 v{S+1}, v{X}, v{X}')
        for q in range(1, 16): A(f'v_fmac_f32 v{S+1}, v{X+q}, v{X+q}')
        xsum_rows(A, [f'v{S+1}'], ['v44'])
    A('v_lshlrev_b32 v45, 3, v1')
    A('s_lshl_b32 s40, s35, 7\ns_lshl_b32 s41, s32, 14\ns_add_u32 s40, s40, s41')
    A(f's_add_u32 s40, s40, {WS_ST}')
    A('v_cmp_gt_u32 vcc, 16, v1')
    A('s_and_saveexec_b64 s[44:45], vcc')
    A('buffer_store_dwordx2 v[20:21], v45, s[8:11], s40 offen sc1')
    A('buffer_store_dwordx2 v[22:23], v45, s[8:11], s40 offen offset:128 sc1')
    A('s_mov_b64 exec, s[44:45]')
    for q in range(16): A(f'v_accvgpr_write_b32 a{A_X1+q}, v{X1R+q}')
    stamp(A, 4)

A_X1 = 240
def load_stats2(A, s_tb16, ntb, vbase, vaddr):
    A(f'v_and_b32 {vaddr}, 15, v1')
    A(f'v_lshlrev_b32 {vaddr}, 3, {vaddr}')
    A('v_lshrrev_b32 v47, 4, v1')
    A(f'v_lshl_add_u32 {vaddr}, v47, 16, {vaddr}')
    A(f's_lshl_b32 s40, {s_tb16}, 7')
    A(f's_add_u32 s40, s40, {WS_ST}')
    for j in range(4):
        for tb in range(ntb):
            A(f'buffer_load_dwordx2 v[{vbase+8*tb+2*j}:{vbase+8*tb+2*j+1}], {vaddr}, s[8:11], s40 offen offset:{tb*128} sc1')
        if j < 3: A('s_add_u32 s40, s40, 16384')
    return 4*ntb

def phase_w1(A, name, c):
    BLK = f's{S_BLK}'
    A(f's_lshl_b32 s35, {BLK}, 4\ns_lshl_b32 s38, s30, 2\ns_add_u32 s35, s35, s38')
    A('s_lshl_b32 s34, s32, 9')
    A('v_lshrrev_b32 v17, 4, v1\nv_lshlrev_b32 v17, 4, v17')
    A('v_lshlrev_b32 v16, 4, v1')
    emit_act_addr(A, c, 'v1', 's35')
    A('v_and_b32 v18, 127, v0\nv_lshlrev_b32 v18, 2, v18')
    A('v_lshrrev_b32 v19, 7, v0')
    A(f's_mov_b32 s40, {3584*4}')
    A('v_mul_lo_u32 v19, v19, s40')
    A('v_add_u32 v18, v18, v19')
    A(f's_cmp_ge_u32 s2, 224\ns_cbranch_scc1 {name}_w1skip')
    uv_wait(A)
    A(f's_add_u32 s40, s34, {WS_UVP}')
    for sl in range(8):
        A(f'buffer_load_dword v{48+sl}, v18, s[8:11], s40 offen sc1')
        if sl < 7: A(f's_add_u32 s40, s40, {2*3584*4}')
    VV = [48 + 4*fb if fb < 4 else 20 + 4*(fb-4) for fb in range(8)]
    A('s_waitcnt vmcnt(0)')
    A('v_add_f32 v48, v48, v49\nv_add_f32 v50, v50, v51\nv_add_f32 v52, v52, v53\nv_add_f32 v54, v54, v55')
    A('v_add_f32 v48, v48, v50\nv_add_f32 v52, v52, v54\nv_add_f32 v48, v48, v52')
    A('v_lshlrev_b32 v18, 2, v0')
    A(f'v_add_u32 v18, {LSC}, v18')
    A('ds_write_b32 v18, v48')
    A('s_waitcnt lgkmcnt(0)\ns_barrier')
    A(f'v_add_u32 v18, {LSC}, v17')
    for fb in range(8):
        A(f'ds_read_b128 v[{96+4*fb}:{99+4*fb}], v18 offset:{fb*64}')
        A(f'ds_read_b128 v[{VV[fb]}:{VV[fb]+3}], v18 offset:{512+fb*64}')
    SYNCV[0], SYNCV[1] = 'v44', 'v45'
    sync_wait(A, 2, BLK, 32)
    SYNCV[0], SYNCV[1] = 'v30', 'v31'
    stamp(A, 1)
    load_stats2(A, 's35', 4, 64, 'v46')
    nact = emit_act_prologue(A, c)
    A(f's_waitcnt vmcnt({nact}) lgkmcnt(0)')
    finish_stats(A, 4, 64, 36, 40, 44)
    for tb in range(4):
        A(f'v_mov_b32 v{64+2*tb}, v{40+tb}\nv_mov_b32 v{65+2*tb}, v{40+tb}')
        A(f'v_sub_f32 v{72+2*tb}, 0, v{36+tb}\nv_sub_f32 v{73+2*tb}, 0, v{36+tb}')
    for fb in range(8):
        for tb in range(4):
            for r in (0, 2):
                d = c.accbase(fb, tb) + r
                A(f'v_pk_mul_f32 v[{d}:{d+1}], v[{VV[fb]+r}:{VV[fb]+r+1}], v[{64+2*tb}:{65+2*tb}]')
            for r in (0, 2):
                d = c.accbase(fb, tb) + r
                A(f'v_pk_fma_f32 v[{d}:{d+1}], v[{96+4*fb+r}:{97+4*fb+r}], v[{72+2*tb}:{73+2*tb}], v[{d}:{d+1}]')
    stamp(A, 2)
    A(f's_add_u32 m0, s{c.s_m0}, {(c.NS-1)*c.stage_bytes}')
    emit_loop(A, c, nact)
    stamp(A, 3)
    A('s_nop 7')
    A(f's_mul_i32 s42, s35, {112*1024}')
    A('s_lshl_b32 s43, s32, 12\ns_add_u32 s42, s42, s43')
    A(f's_add_u32 s42, s42, {WS_H1}')
    cnt = 0
    for tb in range(4):
        for j in range(4):
            d = 24 + 4*(cnt % 4); cnt += 1
            b0, b1 = c.accbase(2*j, tb), c.accbase(2*j+1, tb)
            A(f'v_cvt_pk_bf16_f32 v{d}, v{b0}, v{b0+1}\nv_cvt_pk_bf16_f32 v{d+1}, v{b0+2}, v{b0+3}')
            A(f'v_cvt_pk_bf16_f32 v{d+2}, v{b1}, v{b1+1}\nv_cvt_pk_bf16_f32 v{d+3}, v{b1+2}, v{b1+3}')
            for q in range(4): A(f'v_pk_max_i16 v{d+q}, v{d+q}, 0')
            A(f'buffer_store_dwordx4 v[{d}:{d+3}], v16, s[8:11], s42 offen offset:{j*1024} sc1')
        if tb < 3: A(f's_add_u32 s42, s42, {112*1024}')
    A.label(name + '_w1skip')
    stamp(A, 4)

def phase_w2(A, name, c):
    emit_act_addr(A, c, 'v1', 's35')
    for r in range(64): A(f'v_mov_b32 v{c.acc+r}, 0')
    A('s_lshr_b32 s40, s31, 1\ns_lshl_b32 s40, s40, 1\ns_add_u32 s40, s40, s69')
    sync_wait(A, 3, 's40', 14)
    stamp(A, 1)
    nact = emit_act_prologue(A, c)
    for q in range(16): A(f'v_accvgpr_read_b32 v{X1R+q}, a{A_X1+q}')
    A(f's_add_u32 m0, s{c.s_m0}, {(c.NS-1)*c.stage_bytes}')
    emit_loop(A, c, nact)
    stamp(A, 2)
    exchange_send(A, name + '_w2', c, WS_XB1 + 8192, WS_FLG + 1024*128)
    modsum_issue(A, [5], 6, 's34', 'v18', 112, 40)
    load_stats2(A, 's35', 2, 96, 'v46')
    exchange_flag(A, 16)
    A('s_waitcnt vmcnt(1)')
    modsum_finish(A, [5], 6, 112, 'v18', LSC)
    A('s_waitcnt lgkmcnt(0)\ns_barrier')
    A(f'v_add_u32 v18, {LSC}, v17')
    for fb in range(4):
        A(f'ds_read_b128 v[{80+4*fb}:{83+4*fb}], v18 offset:{fb*64}')
    finish_stats(A, 2, 96, 20, 22, 44)
    for tb in range(2): A(f'v_rcp_f32 v{22+tb}, v{22+tb}')
    A('v_and_b32 v24, 15, v1\nv_lshlrev_b32 v24, 11, v24')
    A('v_bfe_u32 v25, v1, 4, 1\nv_lshl_add_u32 v24, v25, 5, v24')
    A('v_lshrrev_b32 v25, 5, v1\nv_lshl_add_u32 v24, v25, 4, v24')
    A('s_lshl_b32 s43, s35, 15\ns_add_u32 s43, s43, s33')
    A('s_waitcnt lgkmcnt(0)')
    exchange_recv(A, name + '_w2', c, flag=False)
    stamp(A, 3)
    for tb in range(2):
        X = 224
        for fb in range(4):
            xr = 64 + 8*tb + 4*(fb // 2) + 2*(fb % 2)
            for r in range(4): A(f'v_mul_f32 v{c.accbase(fb,tb)+r}, v{c.accbase(fb,tb)+r}, v{22+tb}')
            for h in range(2):
                unpack_lo(A, f'v{X+4*fb+2*h}', f'v{xr+h}'); unpack_hi(A, f'v{X+4*fb+2*h+1}', f'v{xr+h}')
            for r in range(4):
                A(f'v_fmac_f32 v{X+4*fb+r}, v{80+4*fb+r}, v{c.accbase(fb, tb)+r}')
        P = 240 + 8*tb
        for q in range(8): A(f'v_cvt_pk_bf16_f32 v{P+q}, v{X+2*q}, v{X+2*q+1}')
        for j in range(2):
            A(f'v_permlane16_swap_b32 v{P+4*j}, v{P+4*j+2}')
            A(f'v_permlane16_swap_b32 v{P+4*j+1}, v{P+4*j+3}')
        for j in range(2):
            A(f'buffer_store_dwordx4 v[{P+4*j}:{P+4*j+3}], v24, s[16:19], s43 offen offset:{j*64}')
        if tb == 0: A('s_add_u32 s43, s43, 32768')
    stamp(A, 4)
```

```python
from common import *
import common

class GR:
    def __init__(self, q=3, rg=4, off=5, t0=6, t1=7, t2=8, t3=9, rd=10, res=20, vec=32, w=64, acc=128, tmp=160, s0=20, s1=21, sx=22):
        self.__dict__.update(locals())
G0 = GR()

MOD_NT = True
KV_NT = True
def gemv_issue(A, s_w, wstride, s_base, nld, g=G0, pol=''):
    A(f'v_and_b32 v{g.q}, 15, v0')
    A(f'v_lshrrev_b32 v{g.rg}, 4, v0')
    A(f's_mov_b32 s{g.s0}, {wstride}')
    A(f'v_mul_lo_u32 v{g.off}, v{g.rg}, s{g.s0}')
    A(f'v_lshl_add_u32 v{g.off}, v{g.q}, 4, v{g.off}')
    A(f's_mov_b32 s{g.s1}, {s_base}')
    for i in range(nld):
        A(f'buffer_load_dwordx4 v[{g.w+4*i}:{g.w+3+4*i}], v{g.off}, s[{s_w}:{s_w+3}], s{g.s1} offen{pol}')
        if i < nld - 1: A(f's_add_u32 s{g.s1}, s{g.s1}, {16*wstride}')

def gemv_compute(A, nvec, nld, lds_vec, lds_red, g=G0, stamps=True, nyoung=0, nowait=False):
    A(f'v_lshlrev_b32 v{g.t0}, 2, v{g.rg}')
    if lds_vec >= 32768: A(f'v_add_u32 v{g.t0}, {lds_vec}, v{g.t0}')
    lv = 0 if lds_vec >= 32768 else lds_vec
    for n in range(nvec):
        for i in range(nld):
            A(f'ds_read_b32 v{g.vec+nld*n+i}, v{g.t0} offset:{lv + n*nld*64 + i*64}')
    for n in range(nvec):
        for j in range(8): A(f'v_mov_b32 v{g.acc+8*n+j}, 0')
    A('s_waitcnt lgkmcnt(0)')
    for i in range(nld):
        if not nowait: A(f's_waitcnt vmcnt({nld-1-i+nyoung})')
        if stamps and i == 0: stamp(A, 3)
        if stamps and i == nld - 1: stamp(A, 4)
        for r in range(4):
            A(f'v_lshlrev_b32 v{g.t2}, 16, v{g.w+4*i+r}')
            A(f'v_and_b32 v{g.t3}, 0xffff0000, v{g.w+4*i+r}')
            for n in range(nvec):
                A(f'v_fmac_f32 v{g.acc+8*n+2*r}, v{g.t2}, v{g.vec+nld*n+i}')
                A(f'v_fmac_f32 v{g.acc+8*n+2*r+1}, v{g.t3}, v{g.vec+nld*n+i}')
    regs = [f'v{g.acc+j}' for j in range(8*nvec)]
    tmp = [f'v{g.tmp+j}' for j in range(8*nvec)]
    xsum_rows(A, regs, tmp)
    A(f'v_lshlrev_b32 v{g.t1}, 5, v{g.q}')
    A(f's_lshl_b32 s{g.s0}, s30, 9')
    if lds_red >= 32768: A(f's_add_u32 s{g.s0}, s{g.s0}, {lds_red}')
    lr = 0 if lds_red >= 32768 else lds_red
    A(f'v_add_u32 v{g.t1}, s{g.s0}, v{g.t1}')
    A('v_cmp_gt_u32 vcc, 16, v1')
    A(f's_and_saveexec_b64 s[{g.sx}:{g.sx+1}], vcc')
    for n in range(nvec):
        for h in range(2):
            b = g.acc + 8*n + 4*h
            A(f'ds_write_b128 v{g.t1}, v[{b}:{b+3}] offset:{lr + n*2048 + h*16}')
    A(f's_mov_b64 exec, s[{g.sx}:{g.sx+1}]')
    A('s_waitcnt lgkmcnt(0)\ns_barrier')
    A(f'v_and_b32 v{g.t1}, 127, v0\nv_lshlrev_b32 v{g.t1}, 2, v{g.t1}')
    A(f'v_lshrrev_b32 v{g.t2}, 7, v0\nv_lshl_add_u32 v{g.t1}, v{g.t2}, 11, v{g.t1}')
    if lds_red >= 32768: A(f'v_add_u32 v{g.t1}, {lds_red}, v{g.t1}')
    for w in range(4):
        A(f'ds_read_b32 v{g.rd+w}, v{g.t1} offset:{lr + w*512}')
    A('s_waitcnt lgkmcnt(0)')
    A(f'v_add_f32 v{g.rd}, v{g.rd}, v{g.rd+1}\nv_add_f32 v{g.rd+2}, v{g.rd+2}, v{g.rd+3}\nv_add_f32 v{g.res}, v{g.rd}, v{g.rd+2}')

def kv_relayout(A, name, first_wg):
    kp = ' nt' if KV_NT else ''
    srd(A, 12, 40, 4*2048*128*2)
    srd(A, 16, 42, 4*2048*128*2)
    A(f's_sub_u32 s31, s2, {first_wg}')
    A('s_lshr_b32 s32, s31, 4\ns_and_b32 s33, s31, 15')
    A('s_lshl_b32 s34, s32, 19')
    A('s_lshl_b32 s35, s33, 13')
    A('s_add_u32 s34, s34, s35')
    A(f's_add_u32 s34, s34, {1536*256}')
    A('s_lshl_b32 s35, s31, 14')
    A(f's_add_u32 s35, s35, {WS_KV}')
    A('v_and_b32 v3, 15, v1')
    A('v_lshrrev_b32 v4, 4, v1')
    A('v_lshlrev_b32 v5, 8, v3')
    A('v_lshl_add_u32 v5, v4, 3, v5')
    A('s_lshl_b32 s20, s30, 6')
    A('v_add_u32 v5, s20, v5')
    for j in range(2):
        A(f's_add_u32 s21, s34, {j*16*256}')
        A(f'buffer_load_dwordx2 v[{12+4*j}:{13+4*j}], v5, s[12:15], s21 offen{kp}')
        A(f'buffer_load_dwordx2 v[{14+4*j}:{15+4*j}], v5, s[12:15], s21 offen offset:32{kp}')
    A('v_lshlrev_b32 v6, 10, v4')
    A('v_lshl_add_u32 v6, v3, 1, v6')
    A('s_lshl_b32 s20, s30, 5')
    A('v_add_u32 v6, s20, v6')
    for j in range(2):
        for e in range(8):
            key = 16*(e >> 2) + (e & 3)
            A(f's_add_u32 s21, s34, {j*128 + key*256}')
            A(f'buffer_load_ushort v{32+8*j+e}, v6, s[16:19], s21 offen{kp}')
    A('s_waitcnt vmcnt(0)')
    for j in range(2):
        for r in range(4):
            A(f'v_lshl_or_b32 v{24+4*j+r}, v{33+8*j+2*r}, 16, v{32+8*j+2*r}')
    A('v_lshlrev_b32 v7, 4, v1')
    for j in range(2):
        A('s_lshl_b32 s20, s30, 10')
        A(f's_add_u32 s20, s20, {j*4096}')
        A('s_add_u32 s20, s20, s35')
        A(f'buffer_store_dwordx4 v[{12+4*j}:{15+4*j}], v7, s[8:11], s20 offen')
        A('s_add_u32 s20, s20, 8192')
        A(f'buffer_store_dwordx4 v[{24+4*j}:{27+4*j}], v7, s[8:11], s20 offen')

def mod_piece(A, lab, g=None):
    g = g or G0
    srd(A, 12, 36, 1024*6144*2)
    srd(A, 16, 6, 2048)
    A('s_lshl_b32 s34, s32, 8')
    A('v_and_b32 v10, 127, v0\nv_lshlrev_b32 v10, 1, v10')
    A('buffer_load_ushort v12, v10, s[16:19], s34 offen')
    A(f's_mul_i32 s33, s32, {128*12288}\ns_lshl_b32 s35, s31, 8\ns_add_u32 s33, s33, s35')
    gemv_issue(A, 12, 12288, 's33', 8, g, pol=' nt' if MOD_NT else '')
    A('s_waitcnt vmcnt(8)')
    stamp(A, 2)
    A('v_lshlrev_b32 v14, 16, v12')
    A(f'v_mul_f32 v22, {hexf(-math.log2(math.e))}, v14')
    A('v_exp_f32 v22, v22')
    A('v_add_f32 v22, 1.0, v22')
    A('v_rcp_f32 v22, v22')
    A('v_mul_f32 v14, v14, v22')
    A('v_cvt_pk_bf16_f32 v14, v14, v14')
    A('v_lshlrev_b32 v14, 16, v14')
    A('v_lshlrev_b32 v10, 2, v0')
    A('ds_write_b32 v10, v14')
    A('s_waitcnt lgkmcnt(0)\ns_barrier')
    gemv_compute(A, 1, 8, 0, 4096, g)
    A(f's_mul_i32 s33, s32, {6144*4}\ns_lshl_b32 s35, s31, 9\ns_add_u32 s33, s33, s35')
    A(f's_add_u32 s33, s33, {WS_MODP}')
    A('v_lshlrev_b32 v7, 2, v0')
    A('v_cmp_gt_u32 vcc, 128, v0')
    A('s_and_saveexec_b64 s[22:23], vcc')
    A(f's_cbranch_execz {lab}_skip')
    A('buffer_store_dword v20, v7, s[8:11], s33 offen')
    A.label(lab + '_skip')
    A('s_mov_b64 exec, s[22:23]')

def k_prep(A, name):
    A(kernel_header(name))
    A(f's_cmp_ge_u32 s2, 192\ns_cbranch_scc1 {name}_end')
    stamp_begin(A)
    load_ptr(A, 4, 'ws'); load_ptr(A, 6, 'c'); load_ptr(A, 36, 'wmod'); load_ptr(A, 38, 'x')
    lane_wave(A)
    A('s_waitcnt lgkmcnt(0)')
    stamp(A, 1)
    srd(A, 8, 4, WS_SIZE)
    A(f's_cmp_ge_u32 s2, 128\ns_cbranch_scc1 {name}_kv')
    A('s_and_b32 s31, s2, 15\ns_lshr_b32 s32, s2, 4')
    mod_piece(A, name + '_a')
    A(f's_branch {name}_fin')
    A.label(name + '_kv')
    A('s_sub_u32 s31, s2, 128')
    A('v_lshlrev_b32 v48, 7, v1')
    A('s_lshl_b32 s62, s31, 2\ns_add_u32 s62, s62, s30\ns_lshl_b32 s62, s62, 14')
    srd(A, 56, 38, 2048*2048)
    A('buffer_load_dword v49, v48, s[56:59], s62 offen')
    A('s_add_u32 s62, s62, 8192')
    A('buffer_load_dword v50, v48, s[56:59], s62 offen')
    A('v_lshlrev_b32 v51, 7, v0\nv_mov_b32 v52, 0')
    A(f's_lshl_b32 s63, s31, 12\ns_add_u32 s63, s63, {WS_FLG}')
    A('v_cmp_gt_u32 vcc, 32, v0')
    A('s_and_saveexec_b64 s[22:23], vcc')
    A(f's_cbranch_execz {name}_fin')
    A('buffer_store_dword v52, v51, s[8:11], s63 offen')
    A.label(name + '_fin')
    stamp(A, 5); stamp_flush(A, 0, 6)
    A.label(name + '_end')
    A('s_endpgm')
    return (name, 192, 0, 102)
XPF = False
WQ_K1 = False
WQ_ROW0 = 0
WQPF = True

def k_ln1(A, name):
    NUV = 64
    A(kernel_header(name))
    A(f's_cmp_ge_u32 s2, {256+NUV}\ns_cbranch_scc1 {name}_end')
    stamp_begin(A)
    load_ptr(A, 4, 'ws'); load_ptr(A, 38, 'x'); load_ptr(A, 40, 'kc'); load_ptr(A, 42, 'vc'); load_ptr(A, 60, 'wq')
    lane_wave(A)
    A('s_waitcnt lgkmcnt(0)')
    stamp(A, 1)
    srd(A, 8, 4, WS_SIZE)
    A(f's_cmp_ge_u32 s2, 256\ns_cbranch_scc1 {name}_uv')
    srd(A, 12, 38, 2048*2048)
    A('v_lshlrev_b32 v10, 5, v0')
    A(f's_mov_b32 s21, {WS_MODP}')
    for sl in range(8):
        A(f'buffer_load_dwordx4 v[{64+8*sl}:{67+8*sl}], v10, s[8:11], s21 offen')
        A(f'buffer_load_dwordx4 v[{68+8*sl}:{71+8*sl}], v10, s[8:11], s21 offen offset:16')
        if sl < 7: A(f's_add_u32 s21, s21, {6144*4}')
    A('v_and_b32 v3, 7, v0')
    A('v_bfe_u32 v4, v0, 3, 2')
    A('v_lshrrev_b32 v5, 5, v0')
    A('v_lshlrev_b32 v6, 6, v5')
    A('v_lshl_add_u32 v6, v4, 3, v6')
    A('v_lshl_add_u32 v7, v3, 11, v6')
    A('s_lshl_b32 s20, s2, 14')
    for i in range(4):
        A(f'buffer_load_dwordx2 v[{16+4*i}:{17+4*i}], v7, s[12:15], s20 offen offset:{i*512}')
        A(f'buffer_load_dwordx2 v[{18+4*i}:{19+4*i}], v7, s[12:15], s20 offen offset:{i*512+32}')
    srd(A, 56, 60, 1024*8192)
    A('v_lshlrev_b32 v132, 7, v1')
    A('s_lshl_b32 s62, s2, 2\ns_add_u32 s62, s62, s30\ns_lshl_b32 s62, s62, 13')
    A('buffer_load_dword v133, v132, s[56:59], s62 offen')
    A('s_lshr_b32 s22, s2, 1\ns_lshl_b32 s22, s22, 15')
    A('s_and_b32 s23, s2, 1\ns_lshl_b32 s23, s23, 7\ns_add_u32 s22, s22, s23')
    A('v_lshlrev_b32 v9, 10, v5')
    A('v_lshl_add_u32 v9, v4, 8, v9')
    A('v_lshl_add_u32 v9, v3, 4, v9')
    A('s_waitcnt vmcnt(9)')
    for j in range(8):
        for (x, y) in ((0, 1), (2, 3), (4, 5), (6, 7), (0, 2), (4, 6), (0, 4)):
            A(f'v_add_f32 v{64+8*x+j}, v{64+8*x+j}, v{64+8*y+j}')
    for j in range(4): A(f'v_cvt_pk_bf16_f32 v{72+j}, v{64+2*j}, v{65+2*j}')
    for j in range(4):
        unpack_lo(A, f'v{64+2*j}', f'v{72+j}'); unpack_hi(A, f'v{65+2*j}', f'v{72+j}')
    A('s_cmp_lt_u32 s30, 2')
    A(f's_cbranch_scc1 {name}_nop1')
    for j in range(8): A(f'v_add_f32 v{64+j}, 1.0, v{64+j}')
    for j in range(4): A(f'v_cvt_pk_bf16_f32 v{72+j}, v{64+2*j}, v{65+2*j}')
    for j in range(4):
        unpack_lo(A, f'v{64+2*j}', f'v{72+j}'); unpack_hi(A, f'v{65+2*j}', f'v{72+j}')
    A.label(name + '_nop1')
    A('ds_write_b128 v10, v[64:67] offset:1024')
    A('ds_write_b128 v10, v[68:71] offset:1040')
    A('s_waitcnt vmcnt(1)')
    stamp(A, 2)
    A(f's_add_u32 s23, s22, {WS_XF}')
    for i in range(4):
        A(f'buffer_store_dwordx4 v[{16+4*i}:{19+4*i}], v9, s[8:11], s23 offen')
        if i < 3: A('s_add_u32 s23, s23, 8192')
    for j in range(16):
        unpack_lo(A, f'v{32+2*j}', f'v{16+j}'); unpack_hi(A, f'v{33+2*j}', f'v{16+j}')
    def reduce_tok(reg, ldsoff):
        A(f'v_add_f32_dpp {reg}, {reg}, {reg} row_ror:8 row_mask:0xf bank_mask:0xf')
        xsum_rows(A, [reg], ['v11'])
        A('v_lshlrev_b32 v12, 2, v3')
        A('s_lshl_b32 s24, s30, 5')
        A('v_add_u32 v13, s24, v12')
        A('v_cmp_gt_u32 vcc, 8, v1')
        A('s_and_saveexec_b64 s[26:27], vcc')
        A(f'ds_write_b32 v13, {reg} offset:{ldsoff}')
        A('s_mov_b64 exec, s[26:27]')
        A('s_waitcnt lgkmcnt(0)\ns_barrier')
        for w in range(4): A(f'ds_read_b32 v{128+w}, v12 offset:{ldsoff + 32*w}')
        A('s_waitcnt lgkmcnt(0)')
        A(f'v_add_f32 v128, v128, v129\nv_add_f32 v130, v130, v131\nv_add_f32 {reg}, v128, v130')
    A('v_add_f32 v10, v32, v33')
    for j in range(34, 64): A(f'v_add_f32 v10, v10, v{j}')
    reduce_tok('v10', 0)
    A('v_lshlrev_b32 v8, 1, v6')
    for i in range(4):
        for sub in range(2):
            A(f'ds_read_b128 v[{64+8*i+4*sub}:{67+8*i+4*sub}], v8 offset:{1024 + i*1024 + sub*64}')
            A(f'ds_read_b128 v[{96+8*i+4*sub}:{99+8*i+4*sub}], v8 offset:{1024 + 4096 + i*1024 + sub*64}')
    A(f'v_mul_f32 v10, {hexf(1/1024)}, v10')
    for j in range(32, 64): A(f'v_sub_f32 v{j}, v{j}, v10')
    A('v_mul_f32 v14, v32, v32')
    for j in range(33, 64): A(f'v_fmac_f32 v14, v{j}, v{j}')
    reduce_tok('v14', 256)
    A(f'v_mov_b32 v15, {hexf(1e-5)}')
    A(f'v_fmac_f32 v15, {hexf(1/1024)}, v14')
    A('v_rsq_f32 v15, v15')
    stamp(A, 3)
    A(f's_mov_b32 s24, {hexf(CQ)}')
    A('v_mul_f32 v15, s24, v15')
    for j in range(32):
        A(f'v_mul_f32 v{64+j}, s24, v{64+j}')
        A(f'v_mul_f32 v{32+j}, v{32+j}, v15')
        A(f'v_fma_f32 v{32+j}, v{32+j}, v{96+j}, v{64+j}')
    for j in range(16):
        A(f'v_cvt_pk_bf16_f32 v{16+j}, v{32+2*j}, v{33+2*j}')
    A(f's_add_u32 s23, s22, {WS_H}')
    for i in range(4):
        A(f'buffer_store_dwordx4 v[{16+4*i}:{19+4*i}], v9, s[8:11], s23 offen')
        if i < 3: A('s_add_u32 s23, s23, 8192')
    stamp(A, 4)
    A(f's_branch {name}_fin')
    A.label(name + '_uv')
    kv_relayout(A, name, 256)
    A.label(name + '_fin')
    stamp(A, 5); stamp_flush(A, 1, 6)
    A.label(name + '_end')
    A('s_endpgm')
    return (name, 192, 0, 102)


def k_prep2(A, name):
    A(kernel_header(name))
    A(f's_cmp_ge_u32 s2, 448\ns_cbranch_scc1 {name}_end')
    stamp_begin(A)
    load_ptr(A, 4, 'ws'); load_ptr(A, 6, 'c'); load_ptr(A, 36, 'wmod'); load_ptr(A, 38, 'x'); load_ptr(A, 40, 'kc'); load_ptr(A, 42, 'vc')
    lane_wave(A)
    A('s_waitcnt lgkmcnt(0)')
    stamp(A, 1)
    hstamp(A, 13)
    srd(A, 8, 4, WS_SIZE)
    A(f's_cmp_ge_u32 s2, 64\ns_cbranch_scc0 {name}_kv')
    A('s_sub_u32 s33, s2, 64')
    A('s_mul_hi_u32 s32, s33, 0x5555556\ns_mul_i32 s31, s32, 48\ns_sub_u32 s31, s33, s31')
    mod_piece(A, name + '_a')
    A(f's_branch {name}_fin')
    A.label(name + '_kv')
    A('v_lshlrev_b32 v51, 7, v0\nv_mov_b32 v52, 0')
    A(f's_mul_i32 s63, s2, {34*128}\ns_add_u32 s63, s63, {WS_FLG}')
    A('v_cmp_gt_u32 vcc, 34, v0')
    A('s_and_saveexec_b64 s[22:23], vcc')
    A(f's_cbranch_execz {name}_z')
    A('buffer_store_dword v52, v51, s[8:11], s63 offen')
    A.label(name + '_z')
    A('s_mov_b64 exec, s[22:23]')
    if WQ_K1:
        load_ptr(A, 60, 'wq')
        A('v_lshlrev_b32 v48, 7, v1')
        per = (1024 - WQ_ROW0) * 8192 // 256
        A(f's_lshl_b32 s62, s2, 2\ns_add_u32 s62, s62, s30\ns_mul_i32 s62, s62, {per}\ns_add_u32 s62, s62, {WQ_ROW0*8192}')
        A('s_waitcnt lgkmcnt(0)')
        srd(A, 56, 60, 1024*8192)
        for i in range(-(-per // 8192)):
            A(f'buffer_load_dword v{53+i}, v48, s[56:59], s62 offen')
            A('s_add_u32 s62, s62, 8192')
    if XPF:
        A('v_lshlrev_b32 v48, 7, v1')
        A('s_lshl_b32 s62, s2, 2\ns_add_u32 s62, s62, s30\ns_lshl_b32 s62, s62, 14')
        srd(A, 56, 38, 2048*2048)
        A('buffer_load_dword v49, v48, s[56:59], s62 offen')
        A('s_add_u32 s62, s62, 8192')
        A('buffer_load_dword v50, v48, s[56:59], s62 offen')
    kv_relayout(A, name, 0)
    A.label(name + '_fin')
    stamp(A, 5); stamp_flush(A, 0, 6)
    A.label(name + '_end')
    A('s_endpgm')
    return (name, 192, 0, 102)


def xhat_piece(A, name, first_wg):
    srd(A, 16, 38, 2048*2048)
    A(f's_sub_u32 s31, s2, {first_wg}')
    A('v_and_b32 v20, 7, v0\nv_bfe_u32 v21, v0, 3, 2\nv_lshrrev_b32 v22, 5, v0')
    A('v_lshlrev_b32 v23, 6, v22\nv_lshl_add_u32 v23, v21, 3, v23')
    A('v_lshlrev_b32 v26, 11, v20\nv_add_u32 v24, v26, v23')
    A('s_lshl_b32 s20, s31, 14')
    X0, X = 48, 64
    A('buffer_load_ushort v27, v26, s[16:19], s20 offen')
    for i in range(4):
        A(f'buffer_load_dwordx2 v[{X0+4*i}:{X0+1+4*i}], v24, s[16:19], s20 offen offset:{i*512}')
        A(f'buffer_load_dwordx2 v[{X0+2+4*i}:{X0+3+4*i}], v24, s[16:19], s20 offen offset:{i*512+32}')
    A('s_lshr_b32 s22, s31, 1\ns_lshl_b32 s22, s22, 15')
    A('s_and_b32 s23, s31, 1\ns_lshl_b32 s23, s23, 7\ns_add_u32 s22, s22, s23')
    A('v_lshlrev_b32 v25, 10, v22\nv_lshl_add_u32 v25, v21, 8, v25\nv_lshl_add_u32 v25, v20, 4, v25')
    A('s_waitcnt vmcnt(0)')
    A('v_lshlrev_b32 v26, 16, v27\nv_mov_b32 v27, v26')
    for j in range(16):
        unpack_lo(A, f'v{X+2*j}', f'v{X0+j}'); unpack_hi(A, f'v{X+1+2*j}', f'v{X0+j}')
    for j in range(16): A(f'v_pk_add_f32 v[{X+2*j}:{X+2*j+1}], v[{X+2*j}:{X+2*j+1}], v[26:27] neg_lo:[0,1] neg_hi:[0,1]')
    A(f'v_pk_add_f32 v[28:29], v[{X}:{X+1}], v[{X+2}:{X+3}]')
    A(f'v_pk_mul_f32 v[30:31], v[{X}:{X+1}], v[{X}:{X+1}]')
    A(f'v_pk_fma_f32 v[30:31], v[{X+2}:{X+3}], v[{X+2}:{X+3}], v[30:31]')
    for j in range(2, 16):
        A(f'v_pk_add_f32 v[28:29], v[28:29], v[{X+2*j}:{X+2*j+1}]')
        A(f'v_pk_fma_f32 v[30:31], v[{X+2*j}:{X+2*j+1}], v[{X+2*j}:{X+2*j+1}], v[30:31]')
    A('v_add_f32 v28, v28, v29\nv_add_f32 v29, v30, v31')
    for r in ('v28', 'v29'): A(f'v_add_f32_dpp {r}, {r}, {r} row_ror:8 row_mask:0xf bank_mask:0xf')
    xsum_rows(A, ['v28', 'v29'], ['v30', 'v31'])
    A('v_lshlrev_b32 v32, 3, v20')
    A('s_lshl_b32 s25, s30, 6')
    A('v_add_u32 v33, s25, v32')
    A('v_cmp_gt_u32 vcc, 8, v1')
    A('s_and_saveexec_b64 s[60:61], vcc')
    A('ds_write_b64 v33, v[28:29]')
    A('s_mov_b64 exec, s[60:61]')
    A('s_waitcnt lgkmcnt(0)\ns_barrier')
    for w in range(4): A(f'ds_read_b64 v[{40+2*w}:{41+2*w}], v32 offset:{64*w}')
    A('s_waitcnt lgkmcnt(0)')
    A('v_pk_add_f32 v[40:41], v[40:41], v[42:43]\nv_pk_add_f32 v[44:45], v[44:45], v[46:47]\nv_pk_add_f32 v[40:41], v[40:41], v[44:45]')
    A(f'v_mul_f32 v40, {hexf(1/1024)}, v40')
    A(f'v_mul_f32 v41, {hexf(1/1024)}, v41')
    A('v_fma_f32 v41, -v40, v40, v41')
    A('v_max_f32 v41, 0, v41')
    A(f'v_add_f32 v41, {hexf(1e-5)}, v41')
    A('v_rsq_f32 v42, v41')
    A('s_nop 0')
    A('v_mul_f32 v44, v40, v42')
    A('v_sub_f32 v44, 0, v44\nv_mov_b32 v45, v44\nv_mov_b32 v43, v42')
    for j in range(16):
        A(f'v_pk_fma_f32 v[{X+2*j}:{X+2*j+1}], v[{X+2*j}:{X+2*j+1}], v[42:43], v[44:45]')
    for j in range(16):
        A(f'v_cvt_pk_bf16_f32 v{X0+j}, v{X+2*j}, v{X+1+2*j}')
    A(f's_add_u32 s23, s22, {WS_XF}')
    for i in range(4):
        A(f'buffer_store_dwordx4 v[{X0+4*i}:{X0+3+4*i}], v25, s[8:11], s23 offen')
        if i < 3: A('s_add_u32 s23, s23, 8192')

G1 = GR(acc=96, tmp=104)
def k_prep3(A, name):
    A(kernel_header(name))
    A(f's_cmp_ge_u32 s2, 704\ns_cbranch_scc1 {name}_end')
    stamp_begin(A)
    load_ptr(A, 4, 'ws'); load_ptr(A, 6, 'c'); load_ptr(A, 36, 'wmod'); load_ptr(A, 38, 'x'); load_ptr(A, 40, 'kc'); load_ptr(A, 42, 'vc')
    lane_wave(A)
    A('s_waitcnt lgkmcnt(0)')
    stamp(A, 1)
    srd(A, 8, 4, WS_SIZE)
    A(f's_cmp_ge_u32 s2, 640\ns_cbranch_scc1 {name}_kv')
    A(f's_cmp_ge_u32 s2, 256\ns_cbranch_scc1 {name}_mod')
    xhat_piece(A, name, 0)
    A(f's_branch {name}_fin')
    A.label(name + '_mod')
    A('s_sub_u32 s33, s2, 256')
    A('s_and_b32 s31, s33, 15\ns_lshr_b32 s32, s33, 4')
    A(f's_cmp_lt_u32 s33, 128\ns_cbranch_scc1 {name}_m2')
    A('s_sub_u32 s33, s33, 128')
    A('s_and_b32 s31, s33, 31\ns_add_u32 s31, s31, 16\ns_lshr_b32 s32, s33, 5')
    A.label(name + '_m2')
    mod_piece(A, name + '_a', G1)
    A(f's_branch {name}_fin')
    A.label(name + '_kv')
    A('s_sub_u32 s64, s2, 640')
    A('v_lshlrev_b32 v51, 7, v0\nv_mov_b32 v52, 0')
    A(f's_mul_i32 s63, s64, {34*128}\ns_add_u32 s63, s63, {WS_FLG}')
    A('v_cmp_gt_u32 vcc, 34, v0')
    A('s_and_saveexec_b64 s[22:23], vcc')
    A(f's_cbranch_execz {name}_z')
    A('buffer_store_dword v52, v51, s[8:11], s63 offen')
    A.label(name + '_z')
    A('s_mov_b64 exec, s[22:23]')
    kv_relayout(A, name, 640)
    A.label(name + '_fin')
    stamp(A, 5); stamp_flush(A, 0, 6)
    A.label(name + '_end')
    A('s_endpgm')
    return (name, 128, 0, 102)
```

```python
import sys, os
from common import *
import hazard
from k_prep import *
NAME = 'adaLN_cond__sliding_block_cached__dense_activation_relu__prompt'
HEADER = open('cdna_kernels/' + NAME + '.s.ref').read().split('; Override launch geometry')[0]

def build(kernels, out, with_meta=False, verbose=False):
    A = Asm()
    descs = []
    hdr = HEADER
    for (fn, name, grid, lds) in kernels:
        hdr += f'; @launch kernel={name} grid=({grid},1,1) block=(256,1,1) lds={lds}\n'
    A('.amdgcn_target "amdgcn-amd-amdhsa--gfx950"\n.text')
    seen = set()
    for (fn, name, grid, lds) in kernels:
        if name in seen: continue
        seen.add(name)
        descs.append(fn(A, name))
    lines, n = hazard.fix(A.lines, verbose)
    A.lines = lines
    A('.section .rodata,"a"\n.p2align 6')
    for (name, vg, ag, sg) in descs:
        A(kernel_desc(name, vg, ag, sg))
    txt = hdr + A.text()
    if with_meta:
        txt += metadata([(name, ((vg+3)//4*4 + ag) if ag else vg, sg, 256) for (name, vg, ag, sg) in descs])
    open(out, 'w').write(txt)
    print(out, 'bytes', len(txt), 'nops inserted', n)
    return [(name, grid, lds) for (fn, name, grid, lds) in kernels]

PERSIST = True
def kernel_list():
    if PERSIST:
        from k_main import k_main
        from k_prep import k_prep2, k_prep3
        import k_main as km
        if km.XHAT: return [(k_prep3, 'prep_kernel', 704, 8192), (k_main, 'main_kernel', 256, 147456)]
        return [(k_prep2, 'prep_kernel', 448, 12288), (k_main, 'main_kernel', 256, 147456)]
    ks = [(k_prep, 'prep_kernel', 192, 12288), (k_ln1, 'ln1_kernel', 320, 12288)]
    try:
        from k_attn import k_qattn
        ks.append((k_qattn, 'qattn_kernel', 256, 147456))
        from k_gemm import k_wo, k_w1, k_w2
        ks += [(k_wo, 'wo_kernel', 256, 139264), (k_w1, 'w1_kernel', 224, 67584), (k_w2, 'w2_kernel', 256, 139264)]
    except ImportError as e:
        print('partial build:', e)
    return ks

def variant(tag, stamps=False, clk=False, **opts):
    import importlib, json, common
    saved = []
    for k, val in opts.items():
        mod, attr = k.split('__')
        m = sys.modules['__main__'] if (mod == 'build' and __name__ == '__main__') else importlib.import_module(mod)
        saved.append((m, attr, getattr(m, attr)))
        setattr(m, attr, val)
    common.STAMPS = stamps; common.STAMP_CLK = clk
    l = build(kernel_list(), f'var_{tag}.s', with_meta=True)
    common.STAMPS = False; common.STAMP_CLK = False
    json.dump(l, open(f'var_{tag}.json', 'w'))
    for m, attr, v in saved: setattr(m, attr, v)

if __name__ == '__main__':
    import json
    import common
    ks = kernel_list()
    common.STAMPS = True
    l = build(ks, 'dev.s', with_meta=True)
    json.dump(l, open('dev.json', 'w'))
    common.STAMP_CLK = True
    l = build(ks, 'devclk.s', with_meta=True)
    json.dump(l, open('devclk.json', 'w'))
    common.STAMP_CLK = False
    common.STAMPS = False
    build(ks, 'dev_nostamp.s', with_meta=True)
    build(ks, 'cdna_kernels/' + NAME + '.s', with_meta=False)
```

```python
from asmlib import *
import math
KA = dict(x=0, kc=8, vc=16, wq=24, wo=32, bx=40, w1=48, w2=56, c=64, wmod=72, out=80, dbg=88, ws=96)
WS_H   = 0x0000000
WS_XF  = 0x0400000
WS_O   = 0x0800000
WS_X1  = 0x1800000
WS_Y   = 0x1C00000
WS_H1  = 0x2000000
WS_KV  = 0x3000000
WS_MOD = 0x3100000
WS_U   = 0x3108000
WS_V   = 0x310C000
WS_ST  = 0x3110000
WS_MODP = 0x3150000
WS_UVP  = 0x3180000
WS_END = 0x3200000
WS_FLG = 0x3200000
WS_CNT = WS_FLG + 2048*128
WS_XB1 = 0x4000000
WS_XB2 = 0x4800000
WS_SIZE = 0x5000000
CQ = math.log2(math.e) / math.sqrt(128.0)
import struct
def f32bits(x): return struct.unpack('<I', struct.pack('<f', x))[0]
def hexf(x): return hex(f32bits(x))

def srd(A, sreg, sptr, nbytes):
    if sreg != sptr:
        A(f's_mov_b32 s{sreg}, s{sptr}')
        A(f's_mov_b32 s{sreg+1}, s{sptr+1}')
    A(f's_mov_b32 s{sreg+2}, {hex(nbytes)}')
    A(f's_mov_b32 s{sreg+3}, 0x20000')

def load_ptr(A, sreg, name):
    A(f's_load_dwordx2 s[{sreg}:{sreg+1}], s[0:1], {KA[name]}')

def lane_wave(A, v_lane='v1', s_wave='s30', vt='v2'):
    A(f'v_and_b32 {v_lane}, 63, v0')
    A(f'v_lshrrev_b32 {vt}, 6, v0')
    A('s_nop 0')
    A(f'v_readfirstlane_b32 {s_wave}, {vt}')

def xsum_rows(A, regs, tmp, op='v_add_f32'):
    for r, t in zip(regs, tmp): A(f'v_mov_b32 {t}, {r}')
    for r, t in zip(regs, tmp): A(f'v_permlane16_swap_b32 {r}, {t}')
    for r, t in zip(regs, tmp): A(f'{op} {r}, {r}, {t}')
    for r, t in zip(regs, tmp): A(f'v_mov_b32 {t}, {r}')
    for r, t in zip(regs, tmp): A(f'v_permlane32_swap_b32 {r}, {t}')
    for r, t in zip(regs, tmp): A(f'{op} {r}, {r}, {t}')

def unpack_lo(A, d, s_): A(f'v_lshlrev_b32 {d}, 16, {s_}')
def unpack_hi(A, d, s_): A(f'v_and_b32 {d}, 0xffff0000, {s_}')

STAMPS = False
STAMP_CLK = False
import sys
def _st(): return sys.modules[__name__].STAMPS
WS_TS = 0x3800000
def stamp(A, i):
    if _st():
        A(f'{"s_memtime" if sys.modules[__name__].STAMP_CLK else "s_memrealtime"} s[{84+2*i}:{85+2*i}]')
def stamp_flush(A, launch_idx, n):
    if not _st(): return
    lab = A.newlabel('tsf')
    A('s_waitcnt lgkmcnt(0)')
    A('s_mov_b64 exec, -1')
    A(f's_cmp_eq_u32 s30, 0\ns_cbranch_scc0 {lab}')
    for i in range(8):
        A(f'v_mov_b32 v{2+i}, s{84+2*i}' if i < n else f'v_mov_b32 v{2+i}, 0')
    A(f's_lshl_b32 s82, s83, 5')
    A(f's_add_u32 s82, s82, {WS_TS + launch_idx*0x8000}')
    A('v_mov_b32 v1, 0')
    A('s_mov_b64 exec, 1')
    A('buffer_store_dwordx4 v[2:5], v1, s[8:11], s82 offen')
    A('buffer_store_dwordx4 v[6:9], v1, s[8:11], s82 offen offset:16')
    A.label(lab)
def stamp_begin(A):
    if _st():
        A('s_mov_b32 s83, s2')
        stamp(A, 0)

def prefetch_w(A, kname, nbytes, s_srd, s_ptr, vaddr, vdummy, s_tmp, nwg=256, s_wg='s2', sh=7):
    load_ptr(A, s_ptr, kname)
    A(f'v_and_b32 {vaddr}, 63, v0')
    A(f'v_lshlrev_b32 {vaddr}, {sh}, {vaddr}')
    A(f's_lshl_b32 s{s_tmp}, {s_wg}, 2')
    A(f's_add_u32 s{s_tmp}, s{s_tmp}, s30')
    per_wave = -(-nbytes // (nwg*4))
    step = 64 << sh
    per_wave = -(-per_wave // step) * step
    A(f's_mul_i32 s{s_tmp}, s{s_tmp}, {per_wave}')
    A('s_waitcnt lgkmcnt(0)')
    srd(A, s_srd, s_ptr, nbytes)
    for i in range(per_wave // step):
        A(f'buffer_load_dword {vdummy}, {vaddr}, s[{s_srd}:{s_srd+3}], s{s_tmp} offen')
        if i + 1 < per_wave // step: A(f's_add_u32 s{s_tmp}, s{s_tmp}, {step}')

def round_bf16(A, r):
    A(f'v_cvt_pk_bf16_f32 {r}, {r}, {r}')
    A(f'v_lshlrev_b32 {r}, 16, {r}')

def modsum_issue(A, secs, lncols, s_col4, vaddr, vdst, s_tmp):
    n = 1 << lncols
    A(f'v_and_b32 {vaddr}, {n-1}, v0')
    A(f'v_lshlrev_b32 {vaddr}, 2, {vaddr}')
    lo = min(secs)
    if len(secs) == 2:
        A(f'v_lshrrev_b32 v{vdst}, {lncols}, v0')
        A(f'v_and_b32 v{vdst}, 1, v{vdst}')
        if secs[1] < secs[0]: A(f'v_xor_b32 v{vdst}, 1, v{vdst}')
        A(f'v_mul_u32_u24 v{vdst}, {abs(secs[1]-secs[0])*4096}, v{vdst}')
        A(f'v_add_u32 {vaddr}, {vaddr}, v{vdst}')
    A(f's_add_u32 s{s_tmp}, {s_col4}, {WS_MODP + lo*4096}')
    for sl in range(8):
        A(f'buffer_load_dword v{vdst+sl}, {vaddr}, s[8:11], s{s_tmp} offen')
        if sl < 7: A(f's_add_u32 s{s_tmp}, s{s_tmp}, {6144*4}')

def modsum_finish(A, secs, lncols, vdst, vtmp, lds_off):
    d = vdst
    A(f'v_add_f32 v{d}, v{d}, v{d+1}\nv_add_f32 v{d+2}, v{d+2}, v{d+3}\nv_add_f32 v{d+4}, v{d+4}, v{d+5}\nv_add_f32 v{d+6}, v{d+6}, v{d+7}')
    A(f'v_add_f32 v{d}, v{d}, v{d+2}\nv_add_f32 v{d+4}, v{d+4}, v{d+6}\nv_add_f32 v{d}, v{d}, v{d+4}')
    round_bf16(A, f'v{d}')
    plus = [s in (1, 4) for s in secs]
    if any(plus):
        A(f'v_add_f32 v{d+1}, 1.0, v{d}')
        round_bf16(A, f'v{d+1}')
        if all(plus):
            A(f'v_mov_b32 v{d}, v{d+1}')
        else:
            A(f'v_lshrrev_b32 {vtmp}, {lncols}, v0')
            A(f'v_and_b32 {vtmp}, 1, {vtmp}')
            A(f'v_cmp_eq_u32 vcc, {plus.index(True)}, {vtmp}')
            A(f'v_cndmask_b32 v{d}, v{d}, v{d+1}, vcc')
    A(f'v_lshlrev_b32 {vtmp}, 2, v0')
    A(f'v_add_u32 {vtmp}, {lds_off}, {vtmp}')
    A(f'ds_write_b32 {vtmp}, v{d}')

def stamp_flush2(A, idx, n, vb, s_wg):
    if not _st(): return
    lab = A.newlabel('tsf')
    A('s_waitcnt lgkmcnt(0)')
    A(f's_cmp_eq_u32 s30, 0\ns_cbranch_scc0 {lab}')
    for i in range(8):
        A(f'v_mov_b32 v{vb+i}, s{84+2*i}' if i < n else f'v_mov_b32 v{vb+i}, 0')
    A(f's_lshl_b32 s82, {s_wg}, 5')
    A(f's_add_u32 s82, s82, {WS_TS + idx*0x8000}')
    A(f'v_mov_b32 v{vb+8}, 0')
    A('s_mov_b64 exec, 1')
    A(f'buffer_store_dwordx4 v[{vb}:{vb+3}], v{vb+8}, s[8:11], s82 offen')
    A(f'buffer_store_dwordx4 v[{vb+4}:{vb+7}], v{vb+8}, s[8:11], s82 offen offset:16')
    A('s_mov_b64 exec, -1')
    A.label(lab)

HSTAMP = False
DBG_WG = 0
def hstamp(A, slot, va=62, vb=63):
    if not sys.modules[__name__].HSTAMP: return
    lab = A.newlabel('hs')
    A(f's_cmp_eq_u32 s2, {sys.modules[__name__].DBG_WG}\ns_cbranch_scc0 {lab}')
    A(f's_cmp_eq_u32 s30, 0\ns_cbranch_scc0 {lab}')
    A('s_load_dwordx2 s[92:93], s[0:1], 88')
    A('s_memrealtime s[94:95]')
    A('s_waitcnt lgkmcnt(0)')
    A('s_mov_b32 s96, s92\ns_mov_b32 s97, s93\ns_mov_b32 s98, 256\ns_mov_b32 s99, 0x20000')
    A(f'v_writelane_b32 v{vb}, s94, 0')
    A('s_mov_b64 exec, 1')
    A(f'v_mov_b32 v{va}, {slot*4}')
    A(f'buffer_store_dword v{vb}, v{va}, s[96:99], 0 offen')
    A('s_mov_b64 exec, -1')
    A.label(lab)
```

```python
from asmlib import *

W_POL = ''
class GemmCfg:
    def __init__(self, **kw):
        self.shape = 32
        self.FEAT = 128
        self.NTB = 2
        self.BK = 64
        self.NS = 4
        self.R = 8
        self.K = 1024
        self.wstride = 8192
        self.acc = 128; self.acc_kind = 'v'
        self.act = 0; self.act_kind = 'a'
        self.wf = 64; self.wf_kind = 'a'
        self.v_tr = 4
        self.v_dma = 2
        self.v_tr_hi = 48
        self.v_act = 12
        self.s_w = 8
        self.s_a = 12
        self.s_woff = 20
        self.s_aoff = 26
        self.s_m0 = 27
        self.s_cnt = 28
        self.s_tmp = 29
        self.lds_base = 0
        self.name = 'g'
        self.order = 'f'
        self.tmpv = 40
        self.stagger = False
        self.__dict__.update(kw)
        self.kstep = 16 if self.shape == 32 else 32
        self.NFB = self.FEAT // self.shape
        self.KT = self.BK // self.kstep
        self.nks = self.K // self.kstep
        self.accn = 16 if self.shape == 32 else 4
        self.rowb = self.FEAT * 2
        self.stage_bytes = self.BK * self.rowb
        self.npiece = self.stage_bytes // 1024 // 4
        self.rows_per_piece = 1024 // self.rowb
        self.ntr = self.NFB if self.shape == 32 else min(self.NFB, 8)
        ut = self.NS
        while (ut * self.KT) % self.R: ut += self.NS
        self.unroll_tiles = ut
        steps = ut * self.KT
        self.AG = 4 if steps % 4 == 0 else (2 if steps % 2 == 0 else 1)
    def reg(self, kind, base, n):
        return v(base, n) if kind == 'v' else a(base, n)
    def accbase(self, fb, tb):
        return self.acc + (fb * self.NTB + tb) * self.accn
    def accreg(self, fb, tb):
        return self.reg(self.acc_kind, self.accbase(fb, tb), self.accn)
    def wreg(self, buf, fb, sub=None):
        base = self.wf + (buf * self.NFB + fb) * 4
        if sub is None: return self.reg(self.wf_kind, base, 4)
        return self.reg(self.wf_kind, base + 2 * sub, 2)
    def actreg(self, slot, tb):
        return self.reg(self.act_kind, self.act + (slot * self.NTB + tb) * 4, 4)
    def mfma(self):
        return 'v_mfma_f32_32x32x16_bf16' if self.shape == 32 else 'v_mfma_f32_16x16x32_bf16'
    def mfma_order(self, st=0):
        if self.order == 'f':
            return [(f, t) for f in range(self.NFB) for t in range(self.NTB)]
        if self.order == 'sf':
            return [(f, t if f % 2 == 0 else self.NTB-1-t) for f in range(self.NFB) for t in range(self.NTB)]

H128 = False
def emit_addr_setup_h128(A, c, v_lane, s_wave, s_featbyte, s_tb0):
    t0, t1, t2, t3 = [f'v{c.tmpv+i}' for i in range(4)]
    A(f'v_lshrrev_b32 {t0}, 3, {v_lane}')
    A(f'v_and_b32 {t1}, 7, {v_lane}')
    A(f'v_bfe_u32 {t2}, {v_lane}, 4, 2')
    A(f'v_lshlrev_b32 {t2}, 1, {t2}')
    A(f'v_xor_b32 {t1}, {t1}, {t2}')
    A(f's_lshl_b32 s{c.s_tmp}, {s_wave}, 4')
    A(f'v_add_u32 {t0}, s{c.s_tmp}, {t0}')
    A(f's_mov_b32 s{c.s_tmp}, {c.wstride}')
    A(f'v_mul_lo_u32 {t0}, {t0}, s{c.s_tmp}')
    A(f'v_add_u32 {t0}, {s_featbyte}, {t0}')
    A(f'v_lshl_add_u32 v{c.v_dma}, {t1}, 4, {t0}')
    A(f's_lshl_b32 s{c.s_m0}, {s_wave}, 12')
    if c.lds_base: A(f's_add_u32 s{c.s_m0}, s{c.s_m0}, {c.lds_base}')
    A(f'v_lshrrev_b32 {t0}, 5, {v_lane}')
    A(f'v_lshlrev_b32 {t0}, 11, {t0}')
    A(f'v_bfe_u32 {t1}, {v_lane}, 2, 3')
    A(f'v_lshl_add_u32 {t0}, {t1}, 7, {t0}')
    A(f'v_and_b32 {t2}, 3, {v_lane}')
    A(f'v_lshl_add_u32 {t0}, {t2}, 3, {t0}')
    if c.lds_base: A(f'v_add_u32 {t0}, {c.lds_base}, {t0}')
    A(f'v_bfe_u32 {t1}, {v_lane}, 3, 2')
    if getattr(c, 's_fbxor', None):
        A(f's_lshl_b32 s{c.s_tmp}, {c.s_fbxor}, 8')
    for fb in range(c.NFB):
        A(f'v_xor_b32 {t2}, {fb & 3}, {t1}')
        A(f'v_lshl_add_u32 {t2}, {t2}, 5, {t0}')
        if getattr(c, 's_fbxor', None):
            A(f'v_mov_b32 {t3}, {(fb >> 2) * 1024}')
            A(f'v_xor_b32 {t3}, s{c.s_tmp}, {t3}')
            A(f'v_add_u32 v{c.v_tr+fb}, {t2}, {t3}')
        else:
            A(f'v_add_u32 v{c.v_tr+fb}, {(fb >> 2) * 1024}, {t2}')
    if s_tb0 is None: return
    emit_act_addr(A, c, v_lane, s_tb0)

def use_h128(c): return H128 and c.shape == 16 and c.rowb == 256 and not getattr(c, 'dma_exp', 0)

def emit_addr_setup(A, c, v_lane, s_wave, s_featbyte, s_tb0):
    if use_h128(c): return emit_addr_setup_h128(A, c, v_lane, s_wave, s_featbyte, s_tb0)
    t0, t1, t2, t3 = [f'v{c.tmpv+i}' for i in range(4)]
    lpr = c.rowb // 16
    sh = lpr.bit_length() - 1
    A(f'v_lshrrev_b32 {t0}, {sh}, {v_lane}')
    A(f'v_and_b32 {t1}, {lpr-1}, {v_lane}')
    if c.shape == 32:
        if c.rowb == 256: A(f'v_and_b32 {t2}, 3, {t0}')
        else: A(f'v_bfe_u32 {t2}, {t0}, 1, 1')
        A(f'v_lshlrev_b32 {t2}, 2, {t2}')
    else:
        if c.rowb == 256:
            A(f'v_and_b32 {t2}, 3, {t0}')
        else:
            A(f'v_bfe_u32 {t2}, {t0}, 1, 2')
        A(f'v_lshlrev_b32 {t2}, 1, {t2}')
    exp = getattr(c, 'dma_exp', 0)
    if exp != 1: A(f'v_xor_b32 {t1}, {t1}, {t2}')
    if exp == 2:
        A(f'v_lshlrev_b32 {t0}, 2, {t0}')
    if exp == 3:
        A(f'v_lshrrev_b32 {t0}, 3, {v_lane}')
        A(f'v_and_b32 {t1}, 7, {v_lane}')
    rows_per_wave = c.npiece * c.rows_per_piece
    A(f's_mul_i32 s{c.s_tmp}, {s_wave}, {rows_per_wave}')
    A(f'v_add_u32 {t0}, s{c.s_tmp}, {t0}')
    A(f's_mov_b32 s{c.s_tmp}, {c.wstride}')
    A(f'v_mul_lo_u32 {t0}, {t0}, s{c.s_tmp}')
    A(f'v_add_u32 {t0}, {s_featbyte}, {t0}')
    A(f'v_lshl_add_u32 v{c.v_dma}, {t1}, 4, {t0}')
    if c.shape == 16 and c.rowb == 256:
        A(f'v_xor_b32 {t1}, 8, {t1}')
        A(f'v_lshl_add_u32 v{c.v_dma+1}, {t1}, 4, {t0}')
    A(f's_mul_i32 s{c.s_m0}, {s_wave}, {c.npiece*1024}')
    if c.lds_base:
        A(f's_add_u32 s{c.s_m0}, s{c.s_m0}, {c.lds_base}')
    if c.shape == 32:
        A(f'v_lshrrev_b32 {t0}, 5, {v_lane}')
        A(f'v_lshlrev_b32 {t0}, 3, {t0}')
        A(f'v_bfe_u32 {t1}, {v_lane}, 2, 2')
        A(f'v_add_u32 {t0}, {t0}, {t1}')
        A(f'v_mul_u32_u24 {t0}, {c.rowb}, {t0}')
        A(f'v_bfe_u32 {t2}, {v_lane}, 4, 1')
        A(f'v_lshlrev_b32 {t2}, 5, {t2}')
        A(f'v_add_u32 {t0}, {t0}, {t2}')
        A(f'v_and_b32 {t2}, 1, {v_lane}')
        A(f'v_lshlrev_b32 {t2}, 4, {t2}')
        A(f'v_bfe_u32 {t3}, {v_lane}, 1, 1')
        A(f'v_lshlrev_b32 {t3}, 3, {t3}')
        A(f'v_add3_u32 {t0}, {t0}, {t2}, {t3}')
        if c.lds_base: A(f'v_add_u32 {t0}, {c.lds_base}, {t0}')
        if c.rowb == 128: A(f'v_bfe_u32 {t1}, {v_lane}, 3, 1')
        for fb in range(c.NFB):
            A(f'v_xor_b32 {t2}, {fb}, {t1}')
            A(f'v_lshlrev_b32 {t2}, 6, {t2}')
            A(f'v_add_u32 v{c.v_tr+fb}, {t0}, {t2}')
    else:
        A(f'v_lshrrev_b32 {t1}, 2, {v_lane}')
        A(f'v_mul_u32_u24 {t0}, {c.rowb}, {t1}')
        A(f'v_and_b32 {t2}, 3, {v_lane}')
        A(f'v_lshl_add_u32 {t0}, {t2}, 3, {t0}')
        if c.lds_base: A(f'v_add_u32 {t0}, {c.lds_base}, {t0}')
        if c.rowb == 256: A(f'v_and_b32 {t1}, 7, {t1}')
        else: A(f'v_bfe_u32 {t1}, {t1}, 1, 2')
        if getattr(c, 's_fbxor', None): A(f'v_xor_b32 {t1}, {c.s_fbxor}, {t1}')
        for fb in range(c.NFB):
            A(f'v_xor_b32 {t2}, {fb}, {t1}')
            A(f'v_lshlrev_b32 {t2}, 5, {t2}')
            A(f'v_add_u32 v{c.v_tr+fb}, {t0}, {t2}')
    if s_tb0 is None: return
    emit_act_addr(A, c, v_lane, s_tb0)

def emit_act_addr(A, c, v_lane, s_tb0):
    t0 = f'v{c.tmpv}'
    tbs = getattr(c, 'tb_stride', c.nks*1024)
    A(f'v_lshlrev_b32 {t0}, 4, {v_lane}')
    A(f's_mul_i32 s{c.s_tmp}, {s_tb0}, {tbs}')
    for tb in range(c.NTB):
        A(f'v_add_u32 v{c.v_act+tb}, s{c.s_tmp}, {t0}')
        if tb + 1 < c.NTB:
            A(f's_add_u32 s{c.s_tmp}, s{c.s_tmp}, {tbs}')

def dma_piece(c, stage, p):
    ins = []
    if use_h128(c):
        ins.append(f's_add_u32 m0, s{c.s_m0}, {stage*c.stage_bytes + p*1024}')
        extra = (p >> 1) * 8 * c.wstride + (p & 1) * 128
        if extra:
            ins.append(f's_add_u32 s{c.s_tmp}, s{c.s_woff}, {extra}')
            so = c.s_tmp
        else:
            ins.append('s_nop 0'); so = c.s_woff
        pol = getattr(c, 'w_pol', '') or W_POL
        ins.append(f'buffer_load_dwordx4 v{c.v_dma}, s[{c.s_w}:{c.s_w+3}], s{so} offen{pol} lds')
        if p == c.npiece - 1:
            ins.append(f's_add_u32 s{c.s_woff}, s{c.s_woff}, {c.BK*c.wstride}')
        return ins
    imm = (p % 4) * 1024
    if p % 4 == 0:
        ins.append(f's_add_u32 m0, s{c.s_m0}, {stage*c.stage_bytes + p*1024}')
    extra = p * c.rows_per_piece * c.wstride - imm
    exp = getattr(c, 'dma_exp', 0)
    if exp == 2: extra = p * c.wstride - imm
    if exp == 3: extra = (p // 2) * 8 * c.wstride + (p % 2) * 128 - imm
    if extra < 0 and exp: imm = 0; extra = extra + (p % 4) * 1024
    if extra:
        ins.append(f's_add_u32 s{c.s_tmp}, s{c.s_woff}, {extra}')
        so = c.s_tmp
    else:
        so = c.s_woff
        if p % 4 == 0: ins.append('s_nop 0')
    off = f' offset:{imm}' if imm else ''
    vd = c.v_dma + (p % 2 if (c.shape == 16 and c.rowb == 256) else 0)
    pol = getattr(c, 'w_pol', '') or W_POL
    ins.append(f'buffer_load_dwordx4 v{vd}, s[{c.s_w}:{c.s_w+3}], s{so} offen{off}{pol} lds')
    if p == c.npiece - 1:
        ins.append(f's_add_u32 s{c.s_woff}, s{c.s_woff}, {c.BK*c.wstride}')
    return ins

def act_loads(c, slot, ksmod):
    ins = []
    for tb in range(c.NTB):
        off = f' offset:{ksmod*1024}' if ksmod else ''
        sc = ' sc1' if getattr(c, 'act_sc1', False) else ''
        ins.append(f'buffer_load_dwordx4 {c.actreg(slot, tb)}, v{c.v_act+tb}, s[{c.s_a}:{c.s_a+3}], s{c.s_aoff} offen{off}{sc}')
    if ksmod == c.AG - 1:
        ins.append(f's_add_u32 s{c.s_aoff}, s{c.s_aoff}, {c.AG*1024}')
    return ins

def tr_reads(c, buf, stage, ks):
    ins = []
    for fb in range(c.NFB):
        for sub in range(2):
            if c.shape == 32:
                off = stage*c.stage_bytes + (ks*16 + sub*4) * c.rowb
            else:
                off = stage*c.stage_bytes + (ks*32 + sub*16) * c.rowb
            vr = c.v_tr + fb
            if off >= 65536: off -= 65536; vr = c.v_tr_hi + fb
            ins.append(f'ds_read_b64_tr_b16 {c.wreg(buf, fb, sub)}, v{vr} offset:{off}')
    return ins

def pieces_at_step(c, ks):
    pos = (ks + 1) % c.KT
    per = c.npiece / c.KT
    lo = int(pos * per + 1e-9); hi = int((pos + 1) * per + 1e-9)
    return list(range(lo, hi))

def emit_prologue_loads(A, c):
    A(f's_mov_b32 s{c.s_woff}, {getattr(c, "woff_init", 0)}')
    ai = getattr(c, 'aoff_init', None)
    if ai: A(f's_add_u32 s{c.s_aoff}, {ai}, {hex(getattr(c, "act_base", 0))}')
    else: A(f's_mov_b32 s{c.s_aoff}, {hex(getattr(c, "act_base", 0))}')
    order = []
    sl = 0
    per = -(-(c.R - 1) // (c.NS - 1))
    nfirst = None
    for T in range(c.NS - 1):
        for p in range(c.npiece):
            order += dma_piece(c, T, p)
        for q in range(per):
            if sl < c.R - 1:
                order += act_loads(c, sl, sl % c.AG); sl += 1
        if T == 0: nfirst = count_vmem(order)
    assert sl == c.R - 1
    for p in pieces_at_step(c, c.KT - 1):
        order += dma_piece(c, c.NS - 1, p)
    for i in order: A(i)
    c.pro_order = [i for i in order if i.startswith('buffer_')]
    return count_vmem(order) - nfirst, per

def emit_w_prologue(A, c, t0=0, t1=None):
    last = t1 is None
    if last: t1 = c.NS - 1
    if t0 == 0:
        A(f's_mov_b32 s{c.s_woff}, {getattr(c, "woff_init", 0)}')
        c.pro_order = []
    order = []
    for T in range(t0, t1):
        for p in range(c.npiece):
            order += dma_piece(c, T, p)
    if last:
        for p in pieces_at_step(c, c.KT - 1):
            order += dma_piece(c, c.NS - 1, p)
    for i in order: A(i)
    c.pro_order += [i for i in order if i.startswith('buffer_')]
    return count_vmem(order)

def emit_act_prologue(A, c):
    ai = getattr(c, 'aoff_init', None)
    if ai: A(f's_add_u32 s{c.s_aoff}, {ai}, {hex(getattr(c, "act_base", 0))}')
    else: A(f's_mov_b32 s{c.s_aoff}, {hex(getattr(c, "act_base", 0))}')
    order = []
    for sl in range(c.R - 1):
        order += act_loads(c, sl, sl % c.AG)
    for i in order: A(i)
    n = count_vmem(order)
    c.pro_order += [i for i in order if i.startswith('buffer_')]
    return n

def count_vmem(ins):
    return sum(1 for i in ins if i.startswith('buffer_'))

def spread(items, gaps, lo, hi):
    n = len(items)
    for i, grp in enumerate(items):
        g = lo + (i * (hi - lo)) // max(n, 1)
        gaps[g] += grp

def build_fills(c):
    steps = c.unroll_tiles * c.KT
    nm = c.NFB * c.NTB
    fills = []
    for st in range(steps):
        T, ks = divmod(st, c.KT)
        gaps = [[] for _ in range(nm)]
        nT, nks_ = divmod(st + 1, c.KT)
        trs = tr_reads(c, (st + 1) % 2, nT % c.NS, nks_)
        al = act_loads(c, (st - 1) % c.R, (st + c.R - 1) % c.AG)
        vm = []
        for ins in al:
            if ins.startswith('buffer'): vm.append([ins])
            else: vm[-1].append(ins)
        Tp = T + c.NS if ks == c.KT - 1 else T + c.NS - 1
        for p in pieces_at_step(c, ks):
            vm.append(dma_piece(c, Tp % c.NS, p))
        if c.layout == 0:
            spread([[t] for t in trs], gaps, 0, nm // 2)
            spread(vm, gaps, nm // 2, nm)
        elif c.layout == 1:
            spread([[t] for t in trs], gaps, 0, (nm * 3) // 4)
            spread(vm, gaps, 0, nm)
        elif c.layout == 2:
            spread([[t] for t in trs], gaps, 0, min(nm, len(trs)))
            spread(vm, gaps, 1, nm)
        elif c.layout == 3:
            spread([[t] for t in trs], gaps, 0, (nm * 3) // 4)
            spread(vm, gaps, nm // 2, nm)
        elif c.layout == 4:
            spread([[t] for t in trs], gaps, 0, nm)
            spread(vm, gaps, 0, nm // 2)
        elif c.layout == 5:
            prs = [trs[i:i+2] for i in range(0, len(trs), 2)]
            for i, pr in enumerate(prs): gaps[min(2*i * nm // (2*len(prs)), nm-1) // 2 * 2] += pr
            for i, g_ in enumerate(vm): gaps[min(((i * nm) // len(vm)) // 2 * 2 + 1, nm - 1)] += g_
        fills.append(gaps)
    return fills, steps

def emit_loop(A, c, npro_after=0):
    fills, steps = build_fills(c)
    assert c.nks % steps == 0
    niter = c.nks // steps
    nv = [sum(count_vmem(g) for g in f) for f in fills]
    def vm_after_act(st):
        src = (st - (c.R - 1)) % steps
        flat = [i for g in fills[src] for i in g]
        idx = max(j for j, i in enumerate(flat) if i.startswith('buffer') and not i.endswith('lds'))
        n = count_vmem(flat[idx+1:])
        for d in range(1, c.R - 1):
            n += nv[(src + d) % steps]
        return n
    def vm_after_dma(st):
        src = st - (c.NS - 2) * c.KT - 1
        while not pieces_at_step(c, src % c.KT): src -= 1
        flat = [i for g in fills[src % steps] for i in g]
        idx = max(j for j, i in enumerate(flat) if i.endswith('lds'))
        n = count_vmem(flat[idx+1:])
        for d in range(src + 1, st):
            n += nv[d % steps]
        return n
    def simulate(n0):
        seq = []; cnt = {'a': 0, 'd': 0}
        def tag(ins):
            if ins.endswith('lds') and f's[{c.s_w}:' not in ins:
                tg = ('x', 0)
            elif ins.endswith('lds'):
                tg = ('d', cnt['d'] // c.npiece); cnt['d'] += 1
            else:
                tg = ('a', cnt['a'] // c.NTB); cnt['a'] += 1
            return tg
        for ins in c.pro_order: seq.append(tag(ins))
        state = {'done': 0}
        def check(n, needs):
            state['done'] = max(state['done'], len(seq) - n)
            for nd in needs:
                if nd not in seq: return False
                last = max(j for j, tg in enumerate(seq) if tg == nd)
                if last >= state['done']: return False
            return True
        if not check(n0, [('d', 0)]): return False
        for st in range(2 * steps):
            T, ks = divmod(st, c.KT)
            n = vm_after_act(st % steps)
            needs = [('a', st)]
            if ks == c.KT - 1:
                n = min(n, vm_after_dma(st % steps + steps))
                needs.append(('d', T + 1))
            if not check(min(n, 63), needs): return False
            for g in fills[st % steps]:
                for ins in g:
                    if ins.startswith('buffer_'): seq.append(tag(ins))
        return True
    while npro_after > 0 and not simulate(npro_after): npro_after -= 1
    assert simulate(npro_after), c.name
    lab = f'{c.name}_loop'
    if c.NS * c.stage_bytes > 65536:
        for fb in range(c.NFB): A(f'v_add_u32 v{c.v_tr_hi+fb}, 0x10000, v{c.v_tr+fb}')
    A(f's_mov_b32 s{c.s_cnt}, 0')
    A(f's_waitcnt vmcnt({min(npro_after,63)})')
    A('s_barrier')
    for ins in tr_reads(c, 0, 0, 0): A(ins)
    A.label(lab)
    for st in range(steps):
        T, ks = divmod(st, c.KT)
        n = vm_after_act(st)
        bar = ks == c.KT - 1
        if bar: n = min(n, vm_after_dma(st))
        A(f's_waitcnt vmcnt({min(n,63)}) lgkmcnt(0)')
        if bar: A('s_barrier')
        slot = st % c.R
        for g, (fb, tb) in enumerate(c.mfma_order(st)):
            A(f'{c.mfma()} {c.accreg(fb,tb)}, {c.wreg(st%2, fb)}, {c.actreg(slot, tb)}, {c.accreg(fb,tb)}')
            for ins in fills[st][g]:
                ab = getattr(c, 'ablate', '')
                if 'a' in ab and ins.startswith('buffer') and not ins.endswith('lds'): continue
                if 'd' in ab and ins.endswith('lds'): continue
                if 't' in ab and ins.startswith('ds_read'): continue
                A(ins)
    A(f's_add_u32 s{c.s_cnt}, s{c.s_cnt}, 1')
    A(f's_cmp_lt_u32 s{c.s_cnt}, {niter}')
    A(f's_cbranch_scc1 {lab}')
```

```python
from common import *
from gemmlib import *
import common
from k_prep import gemv_issue, gemv_compute, GR

LDS_K = 65536
LDS_V = 65536 + 32768
V_L16 = 16
V_KA, V_VA = 17, 18
V_LB = 19
V_L = 20
V_NEGM = 24
V_PFA, V_PFI, V_PFD = 48, 50, 52
V_Q = 64
V_S = [128, 160]
V_P = [192, 208]
V_ONES = 240
A_O = 128
A_F = 0
A_LS = 32
A_1 = 48
S_KVOFF = 50
S_IT = 51
S_T0, S_T1 = 52, 53
S_WK = 54
S_RING, S_RING2 = 55, 49
S_GK, S_GV = 56, 57
S_KB, S_VB = 58, 59
S_XB = 48
MFMA = 'v_mfma_f32_16x16x32_bf16'
ROWSUM_MFMA = False
PREFETCH = True
SENT = False
ABL = ''
def nvm(): return 4 + int(PREFETCH) + int(SENT)

def qreg(tb, ks): b = V_Q + (tb*4+ks)*4; return v(b, 4)
def sreg(buf, kb, tb): return V_S[buf] + (kb*4+tb)*4
def preg(buf, tb): return V_P[buf] + tb*4
def oreg(db, tb): return A_O + (db*4+tb)*4
def freg(f): return a(A_F + (f % 8)*4, 4)

def emit_kv_dma_static(A, which, tile):
    base = S_KB if which == 'k' else S_VB
    A(f's_add_u32 s{S_T0}, s{S_KVOFF}, {tile*16384 + (8192 if which == "v" else 0)}')
    A(f's_add_u32 m0, s{base}, {(tile % 4)*8192}')
    A('s_nop 0')
    A(f'buffer_load_dwordx4 v{V_L16}, s[8:11], s{S_T0} offen lds')
    A(f'buffer_load_dwordx4 v{V_L16}, s[8:11], s{S_T0} offen offset:1024 lds')

def frag_read(f):
    if f < 8: return f'ds_read_b128 {freg(f)}, v{V_KA} offset:{f*1024}'
    return f'ds_read_b128 {freg(f)}, v{V_VA} offset:{(f-8)*1024}'

COST = {'v_exp': 8, 'buffer': 8, 'global': 8}
def cost(ins):
    for k, c_ in COST.items():
        if ins.startswith(k): return c_
    return 4

def softmax_items(buf):
    items = []
    for tb in range(4):
        rs = [sreg(buf, kb, tb) + r for kb in range(2) for r in range(4)]
        for j in range(0, 8, 2):
            items.append([f'v_exp_f32 v{rs[j]}, v{rs[j]}'])
            items.append([f'v_exp_f32 v{rs[j+1]}, v{rs[j+1]}'])
            if not ROWSUM_MFMA:
                items.append(('dep', [f'v_add_f32 v{V_L+tb}, v{V_L+tb}, v{rs[j]}', f'v_add_f32 v{V_L+tb}, v{V_L+tb}, v{rs[j+1]}']))
        for q in range(0, 4, 2):
            items.append(('dep', [f'v_cvt_pk_bf16_f32 v{preg(buf, tb)+q}, v{rs[2*q]}, v{rs[2*q+1]}',
                          f'v_cvt_pk_bf16_f32 v{preg(buf, tb)+q+1}, v{rs[2*q+2]}, v{rs[2*q+3]}']))
    return [i[1] if isinstance(i, tuple) else i for i in items]

def softmax_ops(buf):
    out = []
    for it in softmax_items(buf):
        if not it[0].startswith('v_exp'): out.append('s_nop 0')
        out += it
    return out

def vm_groups():
    g1 = [f's_add_u32 m0, s{S_RING}, s{S_KB}', f's_add_u32 s{S_GK}, s{S_GK}, 16384',
          f'buffer_load_dwordx4 v{V_L16}, s[8:11], s{S_GK} offen lds',
          f'buffer_load_dwordx4 v{V_L16}, s[8:11], s{S_GK} offen offset:1024 lds']
    g2 = [f's_add_u32 m0, s{S_RING2}, s{S_VB}', f's_add_u32 s{S_GV}, s{S_GV}, 16384',
          f'buffer_load_dwordx4 v{V_L16}, s[8:11], s{S_GV} offen lds',
          f'buffer_load_dwordx4 v{V_L16}, s[8:11], s{S_GV} offen offset:1024 lds']
    g3 = ['s_mov_b64 exec, 0xffff', f'global_load_dword v{V_PFD}, v[{V_PFA}:{V_PFA+1}], off', 's_mov_b64 exec, -1',
          f'v_lshl_add_u64 v[{V_PFA}:{V_PFA+1}], v[{V_PFI}:{V_PFI+1}], 0, v[{V_PFA}:{V_PFA+1}]']
    g4 = [f'buffer_store_dwordx4 v[{V_ONES}:{V_ONES+3}], v{V_L16}, s[8:11], s{S_XB} offen', f's_add_u32 s{S_XB}, s{S_XB}, 1024']
    return [g1, g2] + ([g3] if PREFETCH else []) + ([g4] if SENT else [])

def barrier_group():
    pre = [f's_waitcnt vmcnt({3*nvm()-4}) lgkmcnt(0)', 's_barrier', f'v_add_u32 v{V_KA}, s{S_RING2}, v{V_LB}']
    post = [f's_add_u32 s{S_T0}, s{S_RING}, {LDS_V - LDS_K}', f'v_add_u32 v{V_VA}, s{S_T0}, v{V_LB}',
            f's_add_u32 s{S_RING}, s{S_RING}, 8192', f's_and_b32 s{S_RING}, s{S_RING}, 0x7fff',
            f's_xor_b32 s{S_RING2}, s{S_RING}, 16384', f's_add_u32 s{S_IT}, s{S_IT}, 1']
    return pre, post

def emit_iter(A, par, do_qk, do_sm, do_pv, ring=True, first_reads_done=True, extra=None):
    groups = []
    if do_qk:
        for kb in range(2):
            for ks in range(4):
                g = []
                for tb in (range(4) if ks % 2 == 0 else range(3, -1, -1)):
                    d = v(sreg(1-par, kb, tb), 4)
                    c = v(V_NEGM + tb*4, 4) if ks == 0 else d
                    g.append(f'{MFMA} {d}, {freg(kb*4+ks)}, {qreg(tb, ks)}, {c}')
                groups.append((kb*4+ks, g))
    if do_pv:
        for db in range(8):
            g = []
            for tb in (range(4) if db % 2 == 0 else range(3, -1, -1)):
                o = a(oreg(db, tb), 4)
                g.append(f'{MFMA} {o}, {freg(8+db)}, {v(preg(1-par, tb), 4)}, {o}')
            if ROWSUM_MFMA and db % 2 == 1:
                tb = db // 2
                l = a(A_LS + 4*tb, 4)
                g.append(f'{MFMA} {l}, {a(A_1, 4)}, {v(preg(1-par, tb), 4)}, {l}')
            groups.append((8+db, g))
    ng = len(groups)
    order = [f for f, _ in groups]
    nxt = [0, 1, 2, 3] if ring else []
    AH = 4
    reads = order + nxt
    gaps = [(gi, j) for gi, (f, g) in enumerate(groups) for j in range(len(g))]
    N = {k: [] for k in gaps}
    V = {k: [] for k in gaps}
    busy = set()
    pre, post = barrier_group() if ring else ([], [])
    bar_g = len(order) - AH
    for gi in range(ng):
        k = gi + AH
        if k < len(reads):
            f = reads[k]
            N[(gi, 0)].append(frag_read(f) if k < len(order) else f'ds_read_b128 {freg(f)}, v{V_KA} offset:{f*1024}')
        if gi % 2 == 0 and gi > 0:
            issued = min(gi + AH, len(reads))
            if not (ring and gi == bar_g):
                N[(gi - 1, len(groups[gi-1][1]) - 1)].append(f's_waitcnt lgkmcnt({max(issued - gi - 2, 0)})')
    if ring:
        lastg = (bar_g - 1, len(groups[bar_g-1][1]) - 1)
        N[lastg] += pre[:2]; V[lastg] += pre[2:]; busy.add(lastg)
        sal = [i for i in post if i.startswith('s_')]
        N[(bar_g, 1)] += [post[0]]; V[(bar_g, 1)] += [post[1]]; busy.add((bar_g, 1))
        rest = post[2:]
        slots = [(bar_g, 2), (bar_g + 1, 1), (bar_g + 1, 2), (bar_g + 2, 1)]
        for s_, ins in zip(slots, rest): N[s_].append(ins)
        vg = vm_groups()
        pos = ({4: [0, 3, 6, 9], 3: [0, 4, 8], 2: [1, 6]}[len(vg)] if ng == 16 else [0, 1, 2, 3])
        for p_, g in zip(pos, vg):
            if ng == 16:
                sl = [(p_, 1), (p_, 2), (p_ + 1, 1), (p_ + 1, 2)]
                if g[0].startswith('s_mov_b64 exec'):
                    N[sl[0]] += g[:3]; V[sl[0]] += g[3:]; busy.add(sl[0])
                else:
                    for s_, ins in zip(sl, g):
                        N[s_].append(ins)
                        if ins.startswith('buffer'): busy.add(s_)
            else:
                N[(p_, 1)] += [i for i in g if not i.startswith('v_')]; V[(p_, 1)] += [i for i in g if i.startswith('v_')]
    items = (softmax_items(par) if do_sm else []) + (extra or [])
    if 'e' in ABL: items = [[i.replace('v_exp_f32', 'v_mov_b32') for i in it] for it in items]
    if 's' in ABL: items = []
    free = [k for k in gaps if k not in busy]
    if len(items) <= len(free):
        for n_, it in enumerate(items):
            V[free[(n_ * len(free)) // len(items)]] += it
    else:
        for n_, it in enumerate(items):
            V[gaps[(n_ * len(gaps)) // len(items)]] += it
    if not first_reads_done:
        for f in order[:AH]: A(frag_read(f))
    A(f's_waitcnt lgkmcnt({max(min(AH, len(reads)) - 2, 0)})')
    for gi, (f, g) in enumerate(groups):
        for j, m in enumerate(g):
            A(m)
            for ins in N[(gi, j)]: A(ins)
            for ins in V[(gi, j)]: A(ins)

def k_qattn(A, name):
    c = GemmCfg(name='qp', shape=16, NTB=4, R=4, wstride=8192, K=1024, act=0, act_kind='a', wf=64, wf_kind='a', acc=128,
                v_tr=4, v_act=12, v_dma=2, layout=1, order='sf', s_w=12, s_a=8)
    A(kernel_header(name))
    A(f's_cmp_ge_u32 s2, 256\ns_cbranch_scc1 {name}_end')
    stamp_begin(A)
    load_ptr(A, 4, 'ws'); load_ptr(A, 36, 'wq'); load_ptr(A, 62, 'wo'); load_ptr(A, 64, 'w2'); load_ptr(A, 66, 'w1'); load_ptr(A, 60, 'c'); load_ptr(A, 44, 'wmod')
    lane_wave(A)
    A('s_and_b32 s31, s2, 1\ns_lshl_b32 s31, s31, 2\ns_bfe_u32 s33, s2, 0x20003\ns_add_u32 s31, s31, s33')
    A('s_bfe_u32 s34, s2, 0x20001\ns_lshl_b32 s32, s34, 3\ns_lshr_b32 s33, s2, 5\ns_add_u32 s32, s32, s33')
    A('s_waitcnt lgkmcnt(0)')
    srd(A, 8, 4, WS_SIZE)
    srd(A, 12, 36, 1024*8192)
    srd(A, 68, 60, 2048)
    srd(A, 44, 44, 1024*12288)
    A('s_lshl_b32 s33, s32, 8')
    A('s_lshl_b32 s35, s31, 4\ns_lshl_b32 s38, s30, 2\ns_add_u32 s35, s35, s38')
    emit_addr_setup(A, c, 'v1', 's30', 's33', 's35')
    assert WS_H == 0
    nafter, per = emit_prologue_loads(A, c)
    A(f'v_lshlrev_b32 v{V_L16}, 4, v1')
    A(f's_lshl_b32 s{S_KVOFF}, s34, 18\ns_add_u32 s{S_KVOFF}, s{S_KVOFF}, {WS_KV}')
    A(f's_lshl_b32 s{S_WK}, s30, 11')
    A(f's_add_u32 s{S_KVOFF}, s{S_KVOFF}, s{S_WK}')
    A(f's_add_u32 s{S_KB}, s{S_WK}, {LDS_K}\ns_add_u32 s{S_VB}, s{S_WK}, {LDS_V}')
    n0 = len(A.lines)
    for which, tile in (('k', 0), ('k', 1), ('v', 0), ('k', 2)):
        emit_kv_dma_static(A, which, tile)
    c.pro_order += [l for l in A.lines[n0:] if l.startswith('buffer_')]
    A(f's_add_u32 m0, s{c.s_m0}, {(c.NS-1)*c.stage_bytes}')
    for r in range(128): A(f'v_mov_b32 v{c.acc+r}, 0')
    stamp(A, 1)
    emit_loop(A, c, nafter + 8)
    stamp(A, 2)
    for tb in range(4):
        for ks in range(4):
            b0, b1 = c.accbase(2*ks, tb), c.accbase(2*ks+1, tb)
            q = V_Q + (tb*4+ks)*4
            A(f'v_cvt_pk_bf16_f32 v{q}, v{b0}, v{b0+1}\nv_cvt_pk_bf16_f32 v{q+1}, v{b0+2}, v{b0+3}')
            A(f'v_cvt_pk_bf16_f32 v{q+2}, v{b1}, v{b1+1}\nv_cvt_pk_bf16_f32 v{q+3}, v{b1+2}, v{b1+3}')
    A('s_waitcnt vmcnt(0)')
    A('s_barrier')
    for r in range(128): A(f'v_accvgpr_write_b32 a{A_O+r}, 0')
    for tb in range(4): A(f'v_mov_b32 v{V_L+tb}, 0')
    if ROWSUM_MFMA:
        for r in range(16): A(f'v_accvgpr_write_b32 a{A_LS+r}, 0')
        A('v_mov_b32 v40, 0x3f803f80')
        for r in range(4): A(f'v_accvgpr_write_b32 a{A_1+r}, v40')
    if PREFETCH:
        A('v_and_b32 v40, 3, v1')
        A('s_lshl_b32 s72, s30, 2')
        A('v_add_u32 v40, s72, v40')
        A(f'v_mov_b32 v{V_PFI+1}, 0')
        def grp(mask, ptr, off_instrs, inc):
            A(f's_mov_b64 exec, {hex(mask)}')
            for i_ in off_instrs: A(i_)
            A(f'v_mov_b32 v{V_PFA+1}, s{ptr+1}')
            A(f'v_add_co_u32 v{V_PFA}, vcc, s{ptr}, v41')
            A(f'v_addc_co_u32 v{V_PFA+1}, vcc, 0, v{V_PFA+1}, vcc')
            A(f'v_mov_b32 v{V_PFI}, {inc}')
        grp(0x000f, 62, ['s_lshl_b32 s73, s2, 15', 'v_lshl_add_u32 v41, v40, 7, s73'], 2048)
        grp(0x00f0, 64, ['s_mul_i32 s73, s2, 28672', 'v_mul_u32_u24 v41, 112, v40', 'v_add_u32 v41, s73, v41'], 1792)
        grp(0x0f00, 66, ['v_mul_u32_u24 v41, 112, v40', 'v_add_u32 v41, s73, v41'], 1792)
        grp(0xf000, 44, ['s_lshr_b32 s73, s2, 5', f's_mul_i32 s73, s73, {128*12288}', 's_and_b32 s74, s2, 31', 's_add_u32 s74, s74, 16',
                         's_lshl_b32 s74, s74, 8', 's_add_u32 s73, s73, s74', 'v_lshrrev_b32 v41, 1, v40', 'v_mul_u32_u24 v41, 12288, v41',
                         'v_and_b32 v42, 1, v40', 'v_lshl_add_u32 v41, v42, 7, v41', 'v_add_u32 v41, s73, v41'], 8*12288)
        A('s_mov_b64 exec, -1')
    A(f's_lshl_b32 s{S_XB}, s2, 2\ns_add_u32 s{S_XB}, s{S_XB}, s30\ns_lshl_b32 s{S_XB}, s{S_XB}, 14\ns_add_u32 s{S_XB}, s{S_XB}, {WS_XB1}')
    for r in range(4): A(f'v_mov_b32 v{V_ONES+r}, -1')
    A(f'v_add_u32 v{V_LB}, {LDS_K}, v{V_L16}')
    A(f'v_mov_b32 v{V_KA}, v{V_LB}')
    for tb in range(4):
        for r in range(4): A(f'v_mov_b32 v{V_NEGM+tb*4+r}, 0')
    A(f's_mov_b32 s{S_IT}, -1')
    A(f's_mov_b32 s{S_RING}, {3*8192}\ns_mov_b32 s{S_RING2}, {1*8192}')
    A(f's_add_u32 s{S_GK}, s{S_KVOFF}, {2*16384}')
    A(f's_add_u32 s{S_GV}, s{S_KVOFF}, {8192}')
    emit_iter(A, 1, True, False, False, first_reads_done=False)
    for tb in range(4):
        r0, r1 = sreg(0, 0, tb), sreg(0, 1, tb)
        m = 40 + tb
        A(f'v_max3_f32 v{m}, v{r0}, v{r0+1}, v{r0+2}')
        A(f'v_max3_f32 v{m}, v{m}, v{r0+3}, v{r1}')
        A(f'v_max3_f32 v{m}, v{m}, v{r1+1}, v{r1+2}')
        A(f'v_max_f32 v{m}, v{m}, v{r1+3}')
    xsum_rows(A, [f'v{40+tb}' for tb in range(4)], [f'v{44+tb}' for tb in range(4)], op='v_max_f32')
    for tb in range(4):
        for r in range(4): A(f'v_sub_f32 v{V_NEGM+tb*4+r}, 0, v{40+tb}')
        for kb in range(2):
            for r in range(4): A(f'v_sub_f32 v{sreg(0,kb,tb)+r}, v{sreg(0,kb,tb)+r}, v{40+tb}')
    stamp(A, 3)
    emit_iter(A, 0, True, True, False)
    lab = name + '_att'
    A.label(lab)
    emit_iter(A, 1, True, True, True)
    emit_iter(A, 0, True, True, True)
    A(f's_cmp_lt_u32 s{S_IT}, 15\ns_cbranch_scc1 {lab}')
    A('s_waitcnt lgkmcnt(0)')
    GM = GR(q=56, rg=57, off=58, t0=59, t1=60, t2=61, t3=62, rd=40, res=44, vec=216, w=224, acc=176, tmp=184, s0=S_T0, s1=S_T1, sx=74)
    A('s_and_b32 s72, s2, 31\ns_add_u32 s72, s72, 16\ns_lshr_b32 s73, s2, 5')
    A('s_lshl_b32 s76, s73, 8')
    A('v_and_b32 v63, 127, v0\nv_lshlrev_b32 v63, 1, v63')
    A('buffer_load_ushort v53, v63, s[68:71], s76 offen')
    A(f's_mul_i32 s76, s73, {128*12288}\ns_lshl_b32 s77, s72, 8\ns_add_u32 s76, s76, s77')
    gemv_issue(A, 44, 12288, 's76', 8, GM)
    emit_iter(A, 1, False, True, True, ring=False, first_reads_done=False)
    A(f's_waitcnt vmcnt({2*nvm()+5})')
    A('s_barrier')
    A(f'v_add_u32 v{V_VA}, {LDS_V + 3*8192}, v{V_L16}')
    emit_iter(A, 0, False, False, True, ring=False, first_reads_done=False)
    stamp(A, 4)
    if ROWSUM_MFMA:
        A('s_nop 7')
        for tb in range(4): A(f'v_accvgpr_read_b32 v{V_L+tb}, a{A_LS+4*tb}')
    else:
        xsum_rows(A, [f'v{V_L+tb}' for tb in range(4)], [f'v{44+tb}' for tb in range(4)])
    A(f's_mov_b32 s{S_T0}, {hexf(2.0**100)}')
    A(f'v_add_f32 v41, v{V_L}, v{V_L+1}\nv_add_f32 v42, v{V_L+2}, v{V_L+3}\nv_add_f32 v41, v41, v42')
    A(f'v_cmp_nle_f32 vcc, v41, s{S_T0}')
    A('s_nop 4')
    A(f's_cbranch_vccnz {name}_slow')
    A.label(name + '_norm')
    for tb in range(4): A(f'v_rcp_f32 v{V_L+tb}, v{V_L+tb}')
    A(f's_lshl_b32 s{S_T0}, s35, 17')
    A(f's_lshl_b32 s{S_T1}, s32, 12')
    A(f's_add_u32 s{S_T0}, s{S_T0}, s{S_T1}\ns_add_u32 s{S_T0}, s{S_T0}, {WS_O}')
    cnt = 0
    for tb in range(4):
        for j in range(4):
            t = 128 + 8*(cnt % 4); d = 160 + 4*(cnt % 4); cnt += 1
            for h in range(2):
                for r in range(4): A(f'v_accvgpr_read_b32 v{t+4*h+r}, a{oreg(2*j+h, tb)+r}')
            for q in range(8): A(f'v_mul_f32 v{t+q}, v{t+q}, v{V_L+tb}')
            for q in range(4): A(f'v_cvt_pk_bf16_f32 v{d+q}, v{t+2*q}, v{t+2*q+1}')
            A(f'buffer_store_dwordx4 v[{d}:{d+3}], v{V_L16}, s[8:11], s{S_T0} offen offset:{j*1024}')
        if tb < 3: A(f's_add_u32 s{S_T0}, s{S_T0}, {1 << 17}')
    A('s_waitcnt vmcnt(24)')
    A('v_lshlrev_b32 v54, 16, v53')
    A(f'v_mul_f32 v55, {hexf(-math.log2(math.e))}, v54')
    A('v_exp_f32 v55, v55')
    A('v_add_f32 v55, 1.0, v55')
    A('v_rcp_f32 v55, v55')
    A('v_mul_f32 v54, v54, v55')
    round_bf16(A, 'v54')
    A('v_lshlrev_b32 v55, 2, v0')
    A('ds_write_b32 v55, v54')
    A('s_waitcnt lgkmcnt(0)\ns_barrier')
    gemv_compute(A, 1, 8, 0, 4096, GM, stamps=False, nyoung=16)
    A(f's_mul_i32 s76, s73, {6144*4}\ns_lshl_b32 s77, s72, 9\ns_add_u32 s76, s76, s77')
    A(f's_add_u32 s76, s76, {WS_MODP}')
    A('v_lshlrev_b32 v55, 2, v0')
    A('v_cmp_gt_u32 vcc, 128, v0')
    A('s_and_saveexec_b64 s[74:75], vcc')
    A(f's_cbranch_execz {name}_fin')
    A('buffer_store_dword v44, v55, s[8:11], s76 offen')
    A(f's_branch {name}_fin')
    A.label(name + '_slow')
    emit_slow(A, name)
    A(f's_branch {name}_norm')
    A.label(name + '_fin')
    stamp(A, 5); stamp_flush(A, 2, 6)
    A.label(name + '_end')
    A('s_endpgm')
    return (name, 256, 256, 102)

def emit_slow(A, name):
    global ROWSUM_MFMA
    A(f's_sub_u32 s{S_KVOFF}, s{S_KVOFF}, s{S_WK}')
    A('s_waitcnt vmcnt(0) lgkmcnt(0)')
    def load_frags(first, n, off):
        for f in range(n):
            A(f's_add_u32 s{S_T1}, s{S_T0}, {off + (f//4)*4096}')
            A(f'buffer_load_dwordx4 {a(A_F + f*4, 4)}, v{V_L16}, s[8:11], s{S_T1} offen offset:{(f%4)*1024}')
        A('s_waitcnt vmcnt(0)')
    def qk(cinit):
        for kb in range(2):
            for ks in range(4):
                for tb in range(4):
                    d = v(sreg(0, kb, tb), 4)
                    cc = cinit(tb) if ks == 0 else d
                    A(f'{MFMA} {d}, {a(A_F + (kb*4+ks)*4, 4)}, {qreg(tb, ks)}, {cc}')
        A('s_nop 7')
    for tb in range(4): A(f'v_mov_b32 v{40+tb}, 0xff800000')
    A(f's_mov_b32 s{S_IT}, 0')
    A.label(name + '_slow1')
    A(f's_lshl_b32 s{S_T0}, s{S_IT}, 14\ns_add_u32 s{S_T0}, s{S_T0}, s{S_KVOFF}')
    load_frags(0, 8, 0)
    qk(lambda tb: '0')
    for tb in range(4):
        for kb in range(2):
            r0 = sreg(0, kb, tb)
            A(f'v_max3_f32 v{40+tb}, v{40+tb}, v{r0}, v{r0+1}')
            A(f'v_max3_f32 v{40+tb}, v{40+tb}, v{r0+2}, v{r0+3}')
    A(f's_add_u32 s{S_IT}, s{S_IT}, 1\ns_cmp_lt_u32 s{S_IT}, 16\ns_cbranch_scc1 {name}_slow1')
    xsum_rows(A, [f'v{40+tb}' for tb in range(4)], [f'v{44+tb}' for tb in range(4)], op='v_max_f32')
    for tb in range(4):
        for r in range(4): A(f'v_sub_f32 v{V_NEGM+tb*4+r}, 0, v{40+tb}')
        A(f'v_mov_b32 v{V_L+tb}, 0')
    for r in range(128): A(f'v_accvgpr_write_b32 a{A_O+r}, 0')
    A(f's_mov_b32 s{S_IT}, 0')
    A.label(name + '_slow2')
    A(f's_lshl_b32 s{S_T0}, s{S_IT}, 14\ns_add_u32 s{S_T0}, s{S_T0}, s{S_KVOFF}')
    load_frags(0, 8, 0)
    qk(lambda tb: v(V_NEGM + tb*4, 4))
    save = ROWSUM_MFMA; ROWSUM_MFMA = False
    for ins in softmax_ops(0): A(ins)
    ROWSUM_MFMA = save
    load_frags(0, 8, 8192)
    for db in range(8):
        for tb in range(4):
            o = a(oreg(db, tb), 4)
            A(f'{MFMA} {o}, {a(A_F + db*4, 4)}, {v(preg(0, tb), 4)}, {o}')
    A(f's_add_u32 s{S_IT}, s{S_IT}, 1\ns_cmp_lt_u32 s{S_IT}, 16\ns_cbranch_scc1 {name}_slow2')
    A('s_nop 7')
    xsum_rows(A, [f'v{V_L+tb}' for tb in range(4)], [f'v{44+tb}' for tb in range(4)])
```

```python
from common import *
from gemmlib import *
import common, k_attn, k_gemm
from k_attn import *
from k_gemm import typeS_cfg, exchange_send, exchange_recv, exchange_flag, load_stats, finish_stats
from k_prep import gemv_issue, gemv_compute, GR

S_BLK, S_HEAD, S_W = 100, 101, 81
LSC = 131072
FORCE_SLOW = False
ACT_SC1 = True
UVCNT = WS_CNT + 64*128

def wave0(A, body):
    lab = A.newlabel('w0')
    A(f's_cmp_eq_u32 s30, 0\ns_cbranch_scc0 {lab}')
    body()
    A.label(lab)

def cnt_addr(A, idx, s_index):
    A(f's_lshl_b32 s78, {s_index}, 7\ns_add_u32 s78, s78, {WS_CNT + idx*16*128}')

def sync_arrive(A, idx, s_index, nyoung, uv=False):
    if nyoung is not None: A(f's_waitcnt vmcnt({nyoung})')
    A('s_barrier')
    def body():
        cnt_addr(A, idx, s_index)
        A('v_mov_b32 v30, 1\nv_mov_b32 v31, 0')
        A('s_mov_b64 exec, 1')
        A('buffer_atomic_add v30, v31, s[8:11], s78 offen sc1')
        if uv:
            lab = A.newlabel('uva')
            A(f's_cmp_ge_u32 s2, 224\ns_cbranch_scc1 {lab}')
            A(f's_and_b32 s78, s2, 7\ns_lshl_b32 s78, s78, 7\ns_add_u32 s78, s78, {UVCNT}')
            A('buffer_atomic_add v30, v31, s[8:11], s78 offen sc1')
            A.label(lab)
        A('s_mov_b64 exec, -1')
    wave0(A, body)

SPOLL = False
def poll(A, s_addr, count):
    l = A.newlabel('pl'); d = A.newlabel('pd')
    A('s_mov_b32 s76, 0')
    if SPOLL:
        A(f's_add_u32 s74, s8, {s_addr}\ns_addc_u32 s75, s9, 0')
        A('s_and_b32 s75, s75, 0xffff')
    A.label(l)
    if SPOLL:
        A('s_load_dword s77, s[74:75], 0 glc')
        A('s_waitcnt lgkmcnt(0)')
    else:
        A(f'buffer_load_dword {SYNCV[0]}, {SYNCV[1]}, s[8:11], {s_addr} offen sc1')
        A('s_waitcnt vmcnt(0)')
        A(f'v_readfirstlane_b32 s77, {SYNCV[0]}')
    A('s_add_u32 s76, s76, 1')
    A(f's_cmp_ge_u32 s77, {count}')
    A(f's_cbranch_scc1 {d}')
    A('s_cmp_lt_u32 s76, 0x40000')
    A(f's_cbranch_scc1 {l}')
    A.label(d)

SYNCV = ['v30', 'v31']
POLL_ALL = False
OUT_POL = ''
FT_ROT = 0
ARR_FIRST = True
def sync_wait(A, idx, s_index, count):
    if POLL_ALL:
        cnt_addr(A, idx, s_index)
        A(f'v_mov_b32 {SYNCV[1]}, 0')
        A('s_mov_b64 exec, 1')
        poll(A, 's78', count)
        A('s_mov_b64 exec, -1')
        return
    def body():
        cnt_addr(A, idx, s_index)
        A(f'v_mov_b32 {SYNCV[1]}, 0')
        A('s_mov_b64 exec, 1')
        poll(A, 's78', count)
        A('s_mov_b64 exec, -1')
    wave0(A, body)
    A('s_barrier')

def uv_wait(A):
    def body():
        l = A.newlabel('pu'); d = A.newlabel('pud')
        A('s_mov_b64 exec, 0xff')
        A('v_lshlrev_b32 v31, 7, v1')
        A(f's_mov_b32 s78, {UVCNT}')
        A('s_mov_b32 s76, 0')
        A.label(l)
        A('buffer_load_dword v30, v31, s[8:11], s78 offen sc1')
        A('s_waitcnt vmcnt(0)')
        A('v_cmp_le_u32 vcc, 28, v30')
        A('s_add_u32 s76, s76, 1')
        A('s_nop 1')
        A('s_cmp_eq_u32 vcc_lo, 0xff')
        A(f's_cbranch_scc1 {d}')
        A('s_cmp_lt_u32 s76, 0x40000')
        A(f's_cbranch_scc1 {l}')
        A.label(d)
        A('s_mov_b64 exec, -1')
    wave0(A, body)
    A('s_barrier')

MID_LATE = False
WQPF = False
WQ_FIRST = 0
def phase_ln(A, name, mid):
    W = f's{S_W}'
    load_ptr(A, 38, 'x')
    A('v_and_b32 v20, 7, v0')
    A('v_bfe_u32 v21, v0, 3, 2')
    A('v_lshrrev_b32 v22, 5, v0')
    A('v_lshlrev_b32 v23, 6, v22')
    A('v_lshl_add_u32 v23, v21, 3, v23')
    A('v_lshlrev_b32 v26, 11, v20')
    A('v_add_u32 v24, v26, v23')
    A(f's_lshl_b32 s20, {W}, 14')
    A('s_waitcnt lgkmcnt(0)')
    srd(A, 16, 38, 2048*2048)
    X0 = 144
    A('buffer_load_ushort v27, v26, s[16:19], s20 offen')
    for i in range(4):
        A(f'buffer_load_dwordx2 v[{X0+4*i}:{X0+1+4*i}], v24, s[16:19], s20 offen offset:{i*512}')
        A(f'buffer_load_dwordx2 v[{X0+2+4*i}:{X0+3+4*i}], v24, s[16:19], s20 offen offset:{i*512+32}')
    A('v_lshlrev_b32 v37, 5, v0')
    A(f's_mov_b32 s21, {WS_MODP}')
    for sl in range(8):
        A(f'buffer_load_dwordx4 v[{64+8*sl}:{67+8*sl}], v37, s[8:11], s21 offen')
        A(f'buffer_load_dwordx4 v[{68+8*sl}:{71+8*sl}], v37, s[8:11], s21 offen offset:16')
        if sl < 7: A(f's_add_u32 s21, s21, {6144*4}')
    nmid = 0 if MID_LATE else mid()
    A(f's_lshr_b32 s22, {W}, 1\ns_lshl_b32 s22, s22, 15')
    A(f's_and_b32 s23, {W}, 1\ns_lshl_b32 s23, s23, 7\ns_add_u32 s22, s22, s23')
    A('v_lshlrev_b32 v25, 10, v22')
    A('v_lshl_add_u32 v25, v21, 8, v25')
    A('v_lshl_add_u32 v25, v20, 4, v25')
    A(f's_mov_b32 s24, {hexf(CQ)}')
    X = 160
    stamp(A, 3)
    A(f's_waitcnt vmcnt({16+nmid})')
    stamp(A, 4)
    A('v_lshlrev_b32 v26, 16, v27')
    A('v_mov_b32 v27, v26')
    for j in range(16):
        unpack_lo(A, f'v{X+2*j}', f'v{X0+j}'); unpack_hi(A, f'v{X+1+2*j}', f'v{X0+j}')
    for j in range(16): A(f'v_pk_add_f32 v[{X+2*j}:{X+2*j+1}], v[{X+2*j}:{X+2*j+1}], v[26:27] neg_lo:[0,1] neg_hi:[0,1]')
    A(f'v_pk_add_f32 v[28:29], v[{X}:{X+1}], v[{X+2}:{X+3}]')
    A(f'v_pk_mul_f32 v[30:31], v[{X}:{X+1}], v[{X}:{X+1}]')
    A(f'v_pk_fma_f32 v[30:31], v[{X+2}:{X+3}], v[{X+2}:{X+3}], v[30:31]')
    for j in range(2, 16):
        A(f'v_pk_add_f32 v[28:29], v[28:29], v[{X+2*j}:{X+2*j+1}]')
        A(f'v_pk_fma_f32 v[30:31], v[{X+2*j}:{X+2*j+1}], v[{X+2*j}:{X+2*j+1}], v[30:31]')
    A('v_add_f32 v28, v28, v29\nv_add_f32 v29, v30, v31')
    for r in ('v28', 'v29'): A(f'v_add_f32_dpp {r}, {r}, {r} row_ror:8 row_mask:0xf bank_mask:0xf')
    xsum_rows(A, ['v28', 'v29'], ['v30', 'v31'])
    A('v_lshlrev_b32 v32, 3, v20')
    A(f'v_add_u32 v32, {LSC}, v32')
    A('s_lshl_b32 s25, s30, 6')
    A('v_add_u32 v33, s25, v32')
    A('v_cmp_gt_u32 vcc, 8, v1')
    A('s_and_saveexec_b64 s[60:61], vcc')
    A('ds_write_b64 v33, v[28:29]')
    A('s_mov_b64 exec, s[60:61]')
    stamp(A, 5)
    A(f's_waitcnt vmcnt({nmid})')
    stamp(A, 6)
    for (x, y) in ((0, 1), (2, 3), (4, 5), (6, 7), (0, 2), (4, 6), (0, 4)):
        for j in range(0, 8, 2):
            A(f'v_pk_add_f32 v[{64+8*x+j}:{65+8*x+j}], v[{64+8*x+j}:{65+8*x+j}], v[{64+8*y+j}:{65+8*y+j}]')
    for j in range(4): A(f'v_cvt_pk_bf16_f32 v{72+j}, v{64+2*j}, v{65+2*j}')
    for j in range(4):
        unpack_lo(A, f'v{64+2*j}', f'v{72+j}'); unpack_hi(A, f'v{65+2*j}', f'v{72+j}')
    A('s_cmp_lt_u32 s30, 2')
    A(f's_cbranch_scc1 {name}_nop1')
    for j in range(8): A(f'v_add_f32 v{64+j}, 1.0, v{64+j}')
    for j in range(4): A(f'v_cvt_pk_bf16_f32 v{72+j}, v{64+2*j}, v{65+2*j}')
    for j in range(4):
        unpack_lo(A, f'v{64+2*j}', f'v{72+j}'); unpack_hi(A, f'v{65+2*j}', f'v{72+j}')
    A.label(name + '_nop1')
    for j in range(8): A(f'v_mul_f32 v{64+j}, s24, v{64+j}')
    A(f'v_add_u32 v37, {LSC}, v37')
    A('ds_write_b128 v37, v[64:67] offset:1024')
    A('ds_write_b128 v37, v[68:71] offset:1040')
    A('s_waitcnt lgkmcnt(0)\ns_barrier')
    stamp(A, 7)
    for w in range(4): A(f'ds_read_b64 v[{40+2*w}:{41+2*w}], v32 offset:{64*w}')
    A('v_lshlrev_b32 v34, 1, v23')
    A(f'v_add_u32 v34, {LSC}, v34')
    for i in range(4):
        for sub in range(2):
            A(f'ds_read_b128 v[{64+8*i+4*sub}:{67+8*i+4*sub}], v34 offset:{1024 + i*1024 + sub*64}')
            A(f'ds_read_b128 v[{96+8*i+4*sub}:{99+8*i+4*sub}], v34 offset:{1024 + 4096 + i*1024 + sub*64}')
    A('s_waitcnt lgkmcnt(0)')
    A('v_pk_add_f32 v[40:41], v[40:41], v[42:43]\nv_pk_add_f32 v[44:45], v[44:45], v[46:47]\nv_pk_add_f32 v[40:41], v[40:41], v[44:45]')
    A(f'v_mul_f32 v40, {hexf(1/1024)}, v40')
    A(f'v_mul_f32 v41, {hexf(1/1024)}, v41')
    A('v_fma_f32 v41, -v40, v40, v41')
    A('v_max_f32 v41, 0, v41')
    A(f'v_add_f32 v41, {hexf(1e-5)}, v41')
    A('v_rsq_f32 v42, v41')
    A('s_nop 0')
    A('v_mul_f32 v44, -v40, v42' if False else 'v_mul_f32 v44, v40, v42')
    A('v_sub_f32 v44, 0, v44\nv_mov_b32 v45, v44\nv_mov_b32 v43, v42')
    for j in range(16):
        A(f'v_pk_fma_f32 v[{X+2*j}:{X+2*j+1}], v[{X+2*j}:{X+2*j+1}], v[42:43], v[44:45]')
    for j in range(16):
        A(f'v_pk_fma_f32 v[{X+2*j}:{X+2*j+1}], v[{X+2*j}:{X+2*j+1}], v[{96+2*j}:{97+2*j}], v[{64+2*j}:{65+2*j}]')
    for j in range(16):
        A(f'v_cvt_pk_bf16_f32 v{X0+j}, v{X+2*j}, v{X+1+2*j}')
    A(f's_add_u32 s23, s22, {WS_H}')
    for i in range(4):
        A(f'buffer_store_dwordx4 v[{X0+4*i}:{X0+3+4*i}], v25, s[8:11], s23 offen sc1')
        if i < 3: A('s_add_u32 s23, s23, 8192')
    if MID_LATE: mid()

XHAT = False
def phase_ln2(A, name, mid):
    W = f's{S_W}'
    A('v_and_b32 v20, 7, v0')
    A('v_bfe_u32 v21, v0, 3, 2')
    A('v_lshrrev_b32 v22, 5, v0')
    A('v_lshlrev_b32 v25, 10, v22')
    A('v_lshl_add_u32 v25, v21, 8, v25')
    A('v_lshl_add_u32 v25, v20, 4, v25')
    A(f's_lshr_b32 s22, {W}, 1\ns_lshl_b32 s22, s22, 15')
    A(f's_and_b32 s23, {W}, 1\ns_lshl_b32 s23, s23, 7\ns_add_u32 s22, s22, s23')
    X0 = 144
    A('v_lshlrev_b32 v37, 5, v0')
    A(f's_mov_b32 s21, {WS_MODP}')
    for sl in range(8):
        A(f'buffer_load_dwordx4 v[{64+8*sl}:{67+8*sl}], v37, s[8:11], s21 offen')
        A(f'buffer_load_dwordx4 v[{68+8*sl}:{71+8*sl}], v37, s[8:11], s21 offen offset:16')
        if sl < 7: A(f's_add_u32 s21, s21, {6144*4}')
    A(f's_add_u32 s23, s22, {WS_XF}')
    for i in range(4):
        A(f'buffer_load_dwordx4 v[{X0+4*i}:{X0+3+4*i}], v25, s[8:11], s23 offen')
        if i < 3: A('s_add_u32 s23, s23, 8192')
    nmid = mid()
    A(f's_mov_b32 s24, {hexf(CQ)}')
    A('v_lshlrev_b32 v23, 6, v22')
    A('v_lshl_add_u32 v23, v21, 3, v23')
    A(f's_waitcnt vmcnt({4+nmid})')
    for (x, y) in ((0, 1), (2, 3), (4, 5), (6, 7), (0, 2), (4, 6), (0, 4)):
        for j in range(0, 8, 2):
            A(f'v_pk_add_f32 v[{64+8*x+j}:{65+8*x+j}], v[{64+8*x+j}:{65+8*x+j}], v[{64+8*y+j}:{65+8*y+j}]')
    for j in range(4): A(f'v_cvt_pk_bf16_f32 v{72+j}, v{64+2*j}, v{65+2*j}')
    for j in range(4):
        unpack_lo(A, f'v{64+2*j}', f'v{72+j}'); unpack_hi(A, f'v{65+2*j}', f'v{72+j}')
    A('s_cmp_lt_u32 s30, 2')
    A(f's_cbranch_scc1 {name}_nop1')
    for j in range(8): A(f'v_add_f32 v{64+j}, 1.0, v{64+j}')
    for j in range(4): A(f'v_cvt_pk_bf16_f32 v{72+j}, v{64+2*j}, v{65+2*j}')
    for j in range(4):
        unpack_lo(A, f'v{64+2*j}', f'v{72+j}'); unpack_hi(A, f'v{65+2*j}', f'v{72+j}')
    A.label(name + '_nop1')
    for j in range(8): A(f'v_mul_f32 v{64+j}, s24, v{64+j}')
    A(f'v_add_u32 v37, {LSC}, v37')
    A('ds_write_b128 v37, v[64:67] offset:1024')
    A('ds_write_b128 v37, v[68:71] offset:1040')
    A('s_waitcnt lgkmcnt(0)\ns_barrier')
    stamp(A, 7)
    A('v_lshlrev_b32 v34, 1, v23')
    A(f'v_add_u32 v34, {LSC}, v34')
    for i in range(4):
        for sub in range(2):
            A(f'ds_read_b128 v[{64+8*i+4*sub}:{67+8*i+4*sub}], v34 offset:{1024 + i*1024 + sub*64}')
            A(f'ds_read_b128 v[{96+8*i+4*sub}:{99+8*i+4*sub}], v34 offset:{1024 + 4096 + i*1024 + sub*64}')
    X = 160
    A(f's_waitcnt vmcnt({nmid})')
    for j in range(16):
        unpack_lo(A, f'v{X+2*j}', f'v{X0+j}'); unpack_hi(A, f'v{X+1+2*j}', f'v{X0+j}')
    A('s_waitcnt lgkmcnt(0)')
    for j in range(16):
        A(f'v_pk_fma_f32 v[{X+2*j}:{X+2*j+1}], v[{X+2*j}:{X+2*j+1}], v[{96+2*j}:{97+2*j}], v[{64+2*j}:{65+2*j}]')
    for j in range(16):
        A(f'v_cvt_pk_bf16_f32 v{X0+j}, v{X+2*j}, v{X+1+2*j}')
    A(f's_add_u32 s23, s22, {WS_H}')
    for i in range(4):
        A(f'buffer_store_dwordx4 v[{X0+4*i}:{X0+3+4*i}], v25, s[8:11], s23 offen sc1')
        if i < 3: A('s_add_u32 s23, s23, 8192')

LAY_A = 5
QDEEP = False
QD_EARLY = True
QD_TOUCH = True
def cfgA(name, wstride, act_base, deep=False, **kw):
    if deep: kw.update(NS=8, v_tr_hi=48)
    return GemmCfg(name=name, shape=16, NTB=4, R=8 if deep else 4, wstride=wstride, K=1024, act=0, act_kind='a', wf=128 if deep else 64, wf_kind='a', acc=128,
                   v_tr=4, v_act=12, v_dma=2, layout=LAY_A, order='sf', s_w=12, s_a=8, act_base=act_base, act_sc1=ACT_SC1, **kw)

def k_main(A, name):
    A(kernel_header(name))
    A(f's_cmp_ge_u32 s2, 256\ns_cbranch_scc1 {name}_end')
    stamp_begin(A)
    load_ptr(A, 4, 'ws'); load_ptr(A, 36, 'wq')
    lane_wave(A)
    BLK, HEAD, W = f's{S_BLK}', f's{S_HEAD}', f's{S_W}'
    A(f's_and_b32 s31, s2, 1\ns_lshl_b32 s31, s31, 2\ns_bfe_u32 s33, s2, 0x20003\ns_add_u32 {BLK}, s31, s33')
    A(f's_bfe_u32 s34, s2, 0x20001\ns_lshl_b32 s32, s34, 3\ns_lshr_b32 s33, s2, 5\ns_add_u32 {HEAD}, s32, s33')
    A(f's_lshl_b32 {W}, {BLK}, 5\ns_add_u32 {W}, {W}, {HEAD}')
    A('s_waitcnt lgkmcnt(0)')
    srd(A, 8, 4, WS_SIZE)
    srd(A, 12, 36, 1024*8192)
    if WQ_FIRST:
        A('v_lshlrev_b32 v48, 7, v1')
        A(f's_lshl_b32 s62, s2, 2\ns_add_u32 s62, s62, s30\ns_mul_i32 s62, s62, {WQ_FIRST*128}\ns_add_u32 s62, s62, {(64-WQ_FIRST)*128*1024}')
        if WQ_FIRST < 64:
            A(f's_mov_b64 exec, {hex((1 << WQ_FIRST) - 1)}' if WQ_FIRST <= 31 else f's_mov_b32 exec_hi, {hex((1 << (WQ_FIRST-32)) - 1)}')
        A('buffer_load_dword v49, v48, s[12:15], s62 offen')
        A('s_mov_b64 exec, -1')
    hstamp(A, 0)
    cq = cfgA('qp', 8192, WS_H, deep=QDEEP)
    def mid():
        A(f's_lshl_b32 s33, {HEAD}, 8')
        emit_addr_setup(A, cq, 'v1', 's30', 's33', None)
        return emit_w_prologue(A, cq, 0, 3) if QDEEP else emit_w_prologue(A, cq)
    (phase_ln2 if XHAT else phase_ln)(A, name, mid)
    stamp(A, 1)
    hstamp(A, 1)
    stamp_flush2(A, 5, 8, 48, 's2')
    npf = 0
    if WQPF:
        lab = A.newlabel('pf')
        A(f's_cmp_eq_u32 s30, 0\ns_cbranch_scc1 {lab}')
        A('s_waitcnt vmcnt(0)')
        A('v_lshlrev_b32 v48, 7, v1')
        A(f's_mul_i32 s62, s2, 32768\ns_sub_u32 s63, s30, 1\ns_mul_i32 s63, s63, {8192+4096}\ns_add_u32 s62, s62, s63')
        A('buffer_load_dword v49, v48, s[12:15], s62 offen')
        A('s_add_u32 s62, s62, 8192')
        A('v_cmp_gt_u32 vcc, 32, v1')
        A('s_and_saveexec_b64 s[60:61], vcc')
        A('buffer_load_dword v50, v48, s[12:15], s62 offen')
        A('s_mov_b64 exec, s[60:61]')
        A(f's_branch {lab}_a')
        A.label(lab)
        A('s_waitcnt vmcnt(0)')
        A.label(lab + '_a')
        sync_arrive(A, 0, BLK, None)
    elif QDEEP and QD_EARLY:
        nl = emit_w_prologue(A, cq, 3)
        sync_arrive(A, 0, BLK, nl)
    else:
        sync_arrive(A, 0, BLK, 0)
    stamp(A, 2)
    A(f's_lshl_b32 s35, {BLK}, 4\ns_lshl_b32 s38, s30, 2\ns_add_u32 s35, s35, s38')
    emit_act_addr(A, cq, 'v1', 's35')
    A(f'v_lshlrev_b32 v{V_L16}, 4, v1')
    A(f's_lshr_b32 s34, {HEAD}, 3')
    A(f's_lshl_b32 s{S_KVOFF}, s34, 18\ns_add_u32 s{S_KVOFF}, s{S_KVOFF}, {WS_KV}')
    A(f's_lshl_b32 s{S_WK}, s30, 11')
    A(f's_add_u32 s{S_KVOFF}, s{S_KVOFF}, s{S_WK}')
    A(f's_add_u32 s{S_KB}, s{S_WK}, {LDS_K}\ns_add_u32 s{S_VB}, s{S_WK}, {LDS_V}')
    for r in range(128): A(f'v_mov_b32 v{cq.acc+r}, 0')
    attention_setup(A)
    sync_wait(A, 0, BLK, 32)
    stamp(A, 3)
    hstamp(A, 2)
    nact = emit_act_prologue(A, cq)
    if QDEEP:
        nx = 0 if QD_EARLY else emit_w_prologue(A, cq, 3)
        if QD_TOUCH:
            A('v_lshlrev_b32 v56, 7, v1')
            A(f's_lshl_b32 s62, s2, 2\ns_add_u32 s62, s62, s30\ns_mul_i32 s62, s62, {36*128}\ns_add_u32 s62, s62, {448*8192}')
            A('s_mov_b32 exec_hi, 0xf')
            A('buffer_load_dword v57, v56, s[12:15], s62 offen')
            A('s_mov_b32 exec_hi, -1')
            cq.pro_order += ['buffer_x lds']; nx += 1
        if QD_EARLY: A(f's_add_u32 m0, s{cq.s_m0}, {(cq.NS-1)*cq.stage_bytes}')
    else:
        for which, tile in (('k', 0), ('k', 1), ('v', 0), ('k', 2)):
            emit_kv_dma_static(A, which, tile)
        cq.pro_order += ['buffer_x lds'] * 8
        nx = 8
        A(f's_add_u32 m0, s{cq.s_m0}, {(cq.NS-1)*cq.stage_bytes}')
    emit_loop(A, cq, nact + nx)
    stamp(A, 4)
    hstamp(A, 3)
    A(f's_mov_b32 s32, {HEAD}')
    attention(A, name, cq)
    stamp(A, 7)
    hstamp(A, 4)
    stamp_flush2(A, 1, 8, 40, 's2')
    co = typeS_cfg('wo', 2048, 4096, WS_O); co.act_sc1 = True; co.v_tr_hi = 216
    mapS2(A, 2048)
    load_ptr(A, 36, 'wo'); load_ptr(A, 58, 'w1'); load_ptr(A, 38, 'x')
    A('s_waitcnt lgkmcnt(0)')
    srd(A, 12, 36, 4096*2048)
    if co.NS > 4: A('s_barrier')
    A(f's_lshl_b32 s40, {BLK}, 1\ns_lshr_b32 s41, {HEAD}, 4\ns_add_u32 s40, s40, s41')
    if ARR_FIRST: sync_arrive(A, 1, 's40', 0)
    emit_addr_setup(A, co, 'v1', 's30', 's67', None)
    nw = emit_w_prologue(A, co)
    nuv = uv_issue(A)
    if not ARR_FIRST:
        A(f's_lshl_b32 s40, {BLK}, 1\ns_lshr_b32 s41, {HEAD}, 4\ns_add_u32 s40, s40, s41')
        sync_arrive(A, 1, 's40', nw + nuv)
    stamp(A, 0)
    uv_compute(A, name)
    phase_wo(A, name, co)
    hstamp(A, 7)
    stamp_flush2(A, 2, 8, 40, 's2')
    c1 = cfgA('w1', 7168, WS_Y)
    load_ptr(A, 36, 'w1')
    A('s_lshr_b32 s40, s31, 1')
    A('s_bfe_u32 s32, s2, 0x20001\ns_mul_i32 s32, s32, 7\ns_lshr_b32 s33, s2, 5\ns_add_u32 s32, s32, s33')
    A('s_min_u32 s32, s32, 27')
    A('s_lshl_b32 s33, s32, 8')
    A('s_waitcnt lgkmcnt(0)')
    srd(A, 12, 36, 1024*7168)
    if ARR_FIRST: sync_arrive(A, 2, 's40', 0)
    emit_addr_setup(A, c1, 'v1', 's30', 's33', None)
    nw = emit_w_prologue(A, c1)
    if not ARR_FIRST: sync_arrive(A, 2, 's40', nw)
    stamp(A, 0)
    phase_w1(A, name, c1)
    hstamp(A, 9)
    stamp_flush2(A, 3, 8, 40, 's2')
    c2 = typeS_cfg('w2', 1792, 3584, WS_H1); c2.act_sc1 = True; c2.v_tr_hi = 216
    A(f's_cmp_ge_u32 s32, 14\ns_cselect_b32 s41, 1, 0\ns_lshl_b32 s46, {BLK}, 1\ns_add_u32 s46, s46, s41')
    mapS2(A, 1792)
    load_ptr(A, 36, 'w2'); load_ptr(A, 38, 'out')
    A('s_waitcnt lgkmcnt(0)')
    srd(A, 12, 36, 3584*2048)
    srd(A, 16, 38, 2048*2048)
    lab = A.newlabel('noarr')
    if ARR_FIRST:
        A(f's_cmp_ge_u32 s2, 224\ns_cbranch_scc1 {lab}')
        sync_arrive(A, 3, 's46', 0)
        A.label(lab)
    emit_addr_setup(A, c2, 'v1', 's30', 's67', None)
    nw = emit_w_prologue(A, c2)
    if not ARR_FIRST:
        A(f's_cmp_ge_u32 s2, 224\ns_cbranch_scc1 {lab}')
        sync_arrive(A, 3, 's46', nw)
        A.label(lab)
    stamp(A, 0)
    phase_w2(A, name, c2)
    hstamp(A, 12)
    stamp_flush2(A, 4, 8, 40, 's2')
    A.label(name + '_end')
    A('s_endpgm')
    return (name, 256, 256, 102)

def mapS2(A, Khalf):
    A('s_and_b32 s69, s2, 1')
    A('s_bfe_u32 s31, s2, 0x20001\ns_lshl_b32 s31, s31, 2\ns_bfe_u32 s33, s2, 0x20003\ns_add_u32 s31, s31, s33')
    A('s_lshr_b32 s68, s2, 5')
    if FT_ROT: A(f's_add_u32 s68, s68, {FT_ROT}\ns_and_b32 s68, s68, 7')
    A('s_lshl_b32 s32, s68, 1\ns_add_u32 s32, s32, s69')
    A('s_lshl_b32 s70, s69, 2')
    A(f's_mul_i32 s71, s69, {Khalf*2048}')
    A(f's_mul_i32 s72, s69, {(Khalf//32)*1024}')
    A('s_lshl_b32 s33, s32, 7')
    A('s_lshl_b32 s67, s68, 8')
    A('s_lshl_b32 s35, s31, 3\ns_lshl_b32 s41, s30, 1\ns_add_u32 s35, s35, s41')
    A('s_lshl_b32 s34, s32, 8')
    A('v_lshrrev_b32 v17, 4, v1\nv_lshlrev_b32 v17, 4, v17')
    A('v_lshlrev_b32 v16, 4, v1')

def attention_setup(A):
    load_ptr(A, 62, 'wo'); load_ptr(A, 64, 'w2'); load_ptr(A, 66, 'w1')
    for r in range(128): A(f'v_accvgpr_write_b32 a{A_O+r}, 0')
    for tb in range(4): A(f'v_mov_b32 v{V_L+tb}, 0')
    A('s_waitcnt lgkmcnt(0)')
    W = 's2'
    if k_attn.PREFETCH:
        A('v_and_b32 v40, 3, v1')
        A('s_lshl_b32 s72, s30, 2')
        A('v_add_u32 v40, s72, v40')
        A(f'v_mov_b32 v{V_PFI+1}, 0')
        def grp(mask, ptr, off_instrs, inc):
            A(f's_mov_b64 exec, {hex(mask)}')
            for i_ in off_instrs: A(i_)
            A(f'v_mov_b32 v{V_PFA+1}, s{ptr+1}')
            A(f'v_add_co_u32 v{V_PFA}, vcc, s{ptr}, v41')
            A(f'v_addc_co_u32 v{V_PFA+1}, vcc, 0, v{V_PFA+1}, vcc')
            A(f'v_mov_b32 v{V_PFI}, {inc}')
        grp(0xf00f, 62, [f's_lshl_b32 s73, {W}, 15', 'v_lshl_add_u32 v41, v40, 7, s73'], 2048)
        grp(0x00f0, 64, [f's_mul_i32 s73, {W}, 28672', 'v_mul_u32_u24 v41, 112, v40', 'v_add_u32 v41, s73, v41'], 1792)
        grp(0x0f00, 66, ['v_mul_u32_u24 v41, 112, v40', 'v_add_u32 v41, s73, v41'], 1792)
        A('s_mov_b64 exec, -1')
    A(f'v_add_u32 v{V_LB}, {LDS_K}, v{V_L16}')
    A(f'v_mov_b32 v{V_KA}, v{V_LB}')
    for tb in range(4):
        for r in range(4): A(f'v_mov_b32 v{V_NEGM+tb*4+r}, 0')
    A(f's_mov_b32 s{S_IT}, -1')
    A(f's_mov_b32 s{S_RING}, {3*8192}\ns_mov_b32 s{S_RING2}, {1*8192}')
    A(f's_add_u32 s{S_GK}, s{S_KVOFF}, {2*16384}')
    A(f's_add_u32 s{S_GV}, s{S_KVOFF}, {8192}')

def attention(A, name, c):
    for tb in range(4):
        for ks in range(4):
            b0, b1 = c.accbase(2*ks, tb), c.accbase(2*ks+1, tb)
            q = V_Q + (tb*4+ks)*4
            A(f'v_cvt_pk_bf16_f32 v{q}, v{b0}, v{b0+1}\nv_cvt_pk_bf16_f32 v{q+1}, v{b0+2}, v{b0+3}')
            A(f'v_cvt_pk_bf16_f32 v{q+2}, v{b1}, v{b1+1}\nv_cvt_pk_bf16_f32 v{q+3}, v{b1+2}, v{b1+3}')
    A('s_waitcnt vmcnt(0) lgkmcnt(0)')
    A('s_barrier')
    if QDEEP:
        A('s_waitcnt vmcnt(0)')
        A('s_barrier')
    emit_iter(A, 1, True, False, False, first_reads_done=False)
    for tb in range(4):
        r0, r1 = sreg(0, 0, tb), sreg(0, 1, tb)
        m = 40 + tb
        A(f'v_max3_f32 v{m}, v{r0}, v{r0+1}, v{r0+2}')
        A(f'v_max3_f32 v{m}, v{m}, v{r0+3}, v{r1}')
        A(f'v_max3_f32 v{m}, v{m}, v{r1+1}, v{r1+2}')
        A(f'v_max_f32 v{m}, v{m}, v{r1+3}')
    xsum_rows(A, [f'v{40+tb}' for tb in range(4)], [f'v{44+tb}' for tb in range(4)], op='v_max_f32')
    for tb in range(4):
        for r in range(4): A(f'v_sub_f32 v{V_NEGM+tb*4+r}, 0, v{40+tb}')
        for kb in range(2):
            for r in range(4): A(f'v_sub_f32 v{sreg(0,kb,tb)+r}, v{sreg(0,kb,tb)+r}, v{40+tb}')
    stamp(A, 5)
    emit_iter(A, 0, True, True, False)
    lab = name + '_att'
    A.label(lab)
    emit_iter(A, 1, True, True, True)
    emit_iter(A, 0, True, True, True)
    A(f's_cmp_lt_u32 s{S_IT}, 15\ns_cbranch_scc1 {lab}')
    A('s_waitcnt lgkmcnt(0)')
    emit_iter(A, 1, False, True, True, ring=False, first_reads_done=False)
    A(f's_waitcnt vmcnt({2*nvm()-4})')
    A('s_barrier')
    A(f'v_add_u32 v{V_VA}, {LDS_V + 3*8192}, v{V_L16}')
    emit_iter(A, 0, False, False, True, ring=False, first_reads_done=False)
    stamp(A, 6)
    if k_attn.ROWSUM_MFMA:
        A('s_nop 7')
        for tb in range(4): A(f'v_accvgpr_read_b32 v{V_L+tb}, a{A_LS+4*tb}')
    else:
        xsum_rows(A, [f'v{V_L+tb}' for tb in range(4)], [f'v{44+tb}' for tb in range(4)])
    A(f's_mov_b32 s{S_T0}, {hexf(2.0**100)}')
    A(f'v_add_f32 v41, v{V_L}, v{V_L+1}\nv_add_f32 v42, v{V_L+2}, v{V_L+3}\nv_add_f32 v41, v41, v42')
    A(f'v_cmp_nle_f32 vcc, v41, s{S_T0}')
    A('s_nop 4')
    A(f's_cbranch_vccz {name}_norm')
    k_attn.emit_slow(A, name)
    A.label(name + '_norm')
    for tb in range(4): A(f'v_rcp_f32 v{40+2*tb}, v{V_L+tb}')
    A('s_nop 0')
    for tb in range(4): A(f'v_mov_b32 v{41+2*tb}, v{40+2*tb}')
    A(f's_lshl_b32 s{S_T0}, s35, 17')
    A(f's_lshl_b32 s{S_T1}, s32, 12')
    A(f's_add_u32 s{S_T0}, s{S_T0}, s{S_T1}\ns_add_u32 s{S_T0}, s{S_T0}, {WS_O}')
    cnt = 0
    for tb in range(4):
        for j in range(4):
            t = 128 + 8*(cnt % 4); d = 160 + 4*(cnt % 4); cnt += 1
            for h in range(2):
                for r in range(4): A(f'v_accvgpr_read_b32 v{t+4*h+r}, a{oreg(2*j+h, tb)+r}')
            for q in range(0, 8, 2): A(f'v_pk_mul_f32 v[{t+q}:{t+q+1}], v[{t+q}:{t+q+1}], v[{40+2*tb}:{41+2*tb}]')
            for q in range(4): A(f'v_cvt_pk_bf16_f32 v{d+q}, v{t+2*q}, v{t+2*q+1}')
            A(f'buffer_store_dwordx4 v[{d}:{d+3}], v{V_L16}, s[8:11], s{S_T0} offen offset:{j*1024} sc1')
        if tb < 3: A(f's_add_u32 s{S_T0}, s{S_T0}, {1 << 17}')

def frag_loads(A, base, dst):
    A(f's_add_u32 s43, s42, {base}')
    for tb in range(2):
        for j in range(2):
            A(f'buffer_load_dwordx4 v[{dst+8*tb+4*j}:{dst+3+8*tb+4*j}], v16, s[8:11], s43 offen offset:{j*1024} sc1')
        if tb == 0: A('s_add_u32 s43, s43, 32768')

GS = GR(q=20, rg=21, off=22, t0=23, t1=24, t2=25, t3=26, rd=28, res=27, vec=224, w=32, acc=240, tmp=208, s0=52, s1=53, sx=54)
def uv_issue(A):
    A('s_mul_hi_u32 s48, s2, 0x924924A')
    A('s_mul_i32 s49, s48, 28\ns_sub_u32 s49, s2, s49')
    A('s_lshl_b32 s47, s48, 9\ns_min_u32 s47, s47, 3584')
    modsum_issue(A, [4, 3], 7, 's47', 'v19', 120, 40)
    srd(A, 16, 58, 1024*7168)
    A('s_min_u32 s50, s48, 7')
    A(f's_mul_i32 s50, s50, {128*7168}\ns_lshl_b32 s51, s49, 8\ns_add_u32 s50, s50, s51')
    gemv_issue(A, 16, 7168, 's50', 8, GS)
    return 16

def uv_compute(A, name):
    A(f's_cmp_ge_u32 s2, 224\ns_cbranch_scc1 {name}_nouv')
    A('s_waitcnt vmcnt(8)')
    modsum_finish(A, [4, 3], 7, 120, 'v19', LSC + 1024)
    A('s_waitcnt lgkmcnt(0)\ns_barrier')
    gemv_compute(A, 2, 8, LSC + 1024, LSC + 2048, GS, stamps=False, nyoung=0)
    A(f's_mul_i32 s50, s48, {2*3584*4}\ns_lshl_b32 s51, s49, 9\ns_add_u32 s50, s50, s51')
    A(f's_add_u32 s50, s50, {WS_UVP}')
    A('v_and_b32 v24, 127, v0\nv_lshlrev_b32 v24, 2, v24')
    A('v_lshrrev_b32 v25, 7, v0')
    A(f's_mov_b32 s52, {3584*4}')
    A('v_mul_lo_u32 v25, v25, s52')
    A('v_add_u32 v24, v24, v25')
    A('buffer_store_dword v27, v24, s[8:11], s50 offen sc1')
    A(f's_branch {name}_nouv2')
    A.label(name + '_nouv')
    A('s_waitcnt vmcnt(0)')
    A.label(name + '_nouv2')

X1R = 64
def x_loads(A):
    srd(A, 44, 38, 2048*2048)
    A('v_and_b32 v28, 15, v1\nv_lshlrev_b32 v28, 11, v28')
    A('v_lshrrev_b32 v29, 4, v1\nv_lshl_add_u32 v28, v29, 3, v28')
    A('s_lshl_b32 s43, s35, 15\ns_add_u32 s43, s43, s33')
    for tb in range(2):
        for fb in range(4):
            r = X1R + 8*tb + 2*fb
            A(f'buffer_load_dwordx2 v[{r}:{r+1}], v28, s[44:47], s43 offen offset:{fb*32}')
        if tb == 0: A('s_add_u32 s43, s43, 32768')

def phase_wo(A, name, c):
    W = 's2'
    emit_act_addr(A, c, 'v1', 's35')
    for r in range(64): A(f'v_mov_b32 v{c.acc+r}, 0')
    A('s_lshr_b32 s40, s31, 1\ns_lshl_b32 s40, s40, 1\ns_add_u32 s40, s40, s69')
    sync_wait(A, 1, 's40', 16)
    stamp(A, 1)
    hstamp(A, 5)
    nact = emit_act_prologue(A, c)
    A(f's_add_u32 m0, s{c.s_m0}, {(c.NS-1)*c.stage_bytes}')
    emit_loop(A, c, nact)
    stamp(A, 2)
    def uvsig():
        lab = A.newlabel('uva')
        A(f's_cmp_ge_u32 s2, 224\ns_cbranch_scc1 {lab}')
        A(f's_and_b32 s78, s2, 7\ns_lshl_b32 s78, s78, 7\ns_add_u32 s78, s78, {UVCNT}')
        A('v_mov_b32 v30, 1\nv_mov_b32 v31, 0')
        A('s_mov_b64 exec, 1')
        A('buffer_atomic_add v30, v31, s[8:11], s78 offen sc1')
        A('s_mov_b64 exec, -1')
        A.label(lab)
    wave0(A, uvsig)
    hstamp(A, 6)
    exchange_send(A, name + '_wo', c, WS_XB1, WS_FLG)
    A('s_lshl_b32 s42, s35, 15\ns_lshl_b32 s43, s32, 11\ns_add_u32 s42, s42, s43')
    modsum_issue(A, [2, 4], 6, 's34', 'v18', 112, 40)
    x_loads(A)
    exchange_flag(A, 16)
    A('s_waitcnt vmcnt(9)')
    modsum_finish(A, [2, 4], 6, 112, 'v18', LSC)
    A('s_waitcnt lgkmcnt(0)\ns_barrier')
    A(f'v_add_u32 v18, {LSC}, v17')
    for fb in range(4):
        A(f'ds_read_b128 v[{80+4*fb}:{83+4*fb}], v18 offset:{fb*64}')
        A(f'ds_read_b128 v[{96+4*fb}:{99+4*fb}], v18 offset:{256+fb*64}')
    A('s_waitcnt lgkmcnt(0)')
    exchange_recv(A, name + '_wo', c, flag=False)
    stamp(A, 3)
    for tb in range(2):
        X = 224
        for fb in range(4):
            xr = 64 + 8*tb + 4*(fb // 2) + 2*(fb % 2)
            for h in range(2):
                unpack_lo(A, f'v{X+4*fb+2*h}', f'v{xr+h}'); unpack_hi(A, f'v{X+4*fb+2*h+1}', f'v{xr+h}')
            for r in range(4):
                A(f'v_fmac_f32 v{X+4*fb+r}, v{80+4*fb+r}, v{c.accbase(fb, tb)+r}')
        P = X1R + 8*tb
        for q in range(8): A(f'v_cvt_pk_bf16_f32 v{P+q}, v{X+2*q}, v{X+2*q+1}')
        for q in range(8):
            unpack_lo(A, f'v{X+2*q}', f'v{P+q}'); unpack_hi(A, f'v{X+2*q+1}', f'v{P+q}')
        Y = 248
        for q in range(16): A(f'v_mul_f32 v{200+q}, v{X+q}, v{96+q}')
        for q in range(8): A(f'v_cvt_pk_bf16_f32 v{Y+q}, v{200+2*q}, v{200+2*q+1}')
        A(f's_add_u32 s43, s42, {WS_Y + tb*32768}')
        for j in range(2):
            A(f'buffer_store_dwordx4 v[{Y+4*j}:{Y+4*j+3}], v16, s[8:11], s43 offen offset:{j*1024} sc1')
        S = 20 + 2*tb
        A(f'v_add_f32 v{S}, v{X}, v{X+1}')
        for q in range(2, 16): A(f'v_add_f32 v{S}, v{S}, v{X+q}')
        xsum_rows(A, [f'v{S}'], ['v44'])
        A(f'v_mul_f32 v{S}, {hexf(1/64)}, v{S}')
        for q in range(16): A(f'v_sub_f32 v{X+q}, v{X+q}, v{S}')
        A(f'v_mul_f32 v{S+1}, v{X}, v{X}')
        for q in range(1, 16): A(f'v_fmac_f32 v{S+1}, v{X+q}, v{X+q}')
        xsum_rows(A, [f'v{S+1}'], ['v44'])
    A('v_lshlrev_b32 v45, 3, v1')
    A('s_lshl_b32 s40, s35, 7\ns_lshl_b32 s41, s32, 14\ns_add_u32 s40, s40, s41')
    A(f's_add_u32 s40, s40, {WS_ST}')
    A('v_cmp_gt_u32 vcc, 16, v1')
    A('s_and_saveexec_b64 s[44:45], vcc')
    A('buffer_store_dwordx2 v[20:21], v45, s[8:11], s40 offen sc1')
    A('buffer_store_dwordx2 v[22:23], v45, s[8:11], s40 offen offset:128 sc1')
    A('s_mov_b64 exec, s[44:45]')
    for q in range(16): A(f'v_accvgpr_write_b32 a{A_X1+q}, v{X1R+q}')
    stamp(A, 4)

A_X1 = 240
def load_stats2(A, s_tb16, ntb, vbase, vaddr):
    A(f'v_and_b32 {vaddr}, 15, v1')
    A(f'v_lshlrev_b32 {vaddr}, 3, {vaddr}')
    A('v_lshrrev_b32 v47, 4, v1')
    A(f'v_lshl_add_u32 {vaddr}, v47, 16, {vaddr}')
    A(f's_lshl_b32 s40, {s_tb16}, 7')
    A(f's_add_u32 s40, s40, {WS_ST}')
    for j in range(4):
        for tb in range(ntb):
            A(f'buffer_load_dwordx2 v[{vbase+8*tb+2*j}:{vbase+8*tb+2*j+1}], {vaddr}, s[8:11], s40 offen offset:{tb*128} sc1')
        if j < 3: A('s_add_u32 s40, s40, 16384')
    return 4*ntb

def phase_w1(A, name, c):
    BLK = f's{S_BLK}'
    A(f's_lshl_b32 s35, {BLK}, 4\ns_lshl_b32 s38, s30, 2\ns_add_u32 s35, s35, s38')
    A('s_lshl_b32 s34, s32, 9')
    A('v_lshrrev_b32 v17, 4, v1\nv_lshlrev_b32 v17, 4, v17')
    A('v_lshlrev_b32 v16, 4, v1')
    emit_act_addr(A, c, 'v1', 's35')
    A('v_and_b32 v18, 127, v0\nv_lshlrev_b32 v18, 2, v18')
    A('v_lshrrev_b32 v19, 7, v0')
    A(f's_mov_b32 s40, {3584*4}')
    A('v_mul_lo_u32 v19, v19, s40')
    A('v_add_u32 v18, v18, v19')
    A(f's_cmp_ge_u32 s2, 224\ns_cbranch_scc1 {name}_w1skip')
    uv_wait(A)
    A(f's_add_u32 s40, s34, {WS_UVP}')
    for sl in range(8):
        A(f'buffer_load_dword v{48+sl}, v18, s[8:11], s40 offen sc1')
        if sl < 7: A(f's_add_u32 s40, s40, {2*3584*4}')
    VV = [48 + 4*fb if fb < 4 else 20 + 4*(fb-4) for fb in range(8)]
    A('s_waitcnt vmcnt(0)')
    A('v_add_f32 v48, v48, v49\nv_add_f32 v50, v50, v51\nv_add_f32 v52, v52, v53\nv_add_f32 v54, v54, v55')
    A('v_add_f32 v48, v48, v50\nv_add_f32 v52, v52, v54\nv_add_f32 v48, v48, v52')
    A('v_lshlrev_b32 v18, 2, v0')
    A(f'v_add_u32 v18, {LSC}, v18')
    A('ds_write_b32 v18, v48')
    A('s_waitcnt lgkmcnt(0)\ns_barrier')
    A(f'v_add_u32 v18, {LSC}, v17')
    for fb in range(8):
        A(f'ds_read_b128 v[{96+4*fb}:{99+4*fb}], v18 offset:{fb*64}')
        A(f'ds_read_b128 v[{VV[fb]}:{VV[fb]+3}], v18 offset:{512+fb*64}')
    SYNCV[0], SYNCV[1] = 'v44', 'v45'
    sync_wait(A, 2, BLK, 32)
    SYNCV[0], SYNCV[1] = 'v30', 'v31'
    stamp(A, 1)
    load_stats2(A, 's35', 4, 64, 'v46')
    hstamp(A, 8, 18, 19)
    nact = emit_act_prologue(A, c)
    A(f's_waitcnt vmcnt({nact}) lgkmcnt(0)')
    finish_stats(A, 4, 64, 36, 40, 44)
    for tb in range(4):
        A(f'v_mov_b32 v{64+2*tb}, v{40+tb}\nv_mov_b32 v{65+2*tb}, v{40+tb}')
        A(f'v_sub_f32 v{72+2*tb}, 0, v{36+tb}\nv_sub_f32 v{73+2*tb}, 0, v{36+tb}')
    for fb in range(8):
        for tb in range(4):
            for r in (0, 2):
                d = c.accbase(fb, tb) + r
                A(f'v_pk_mul_f32 v[{d}:{d+1}], v[{VV[fb]+r}:{VV[fb]+r+1}], v[{64+2*tb}:{65+2*tb}]')
            for r in (0, 2):
                d = c.accbase(fb, tb) + r
                A(f'v_pk_fma_f32 v[{d}:{d+1}], v[{96+4*fb+r}:{97+4*fb+r}], v[{72+2*tb}:{73+2*tb}], v[{d}:{d+1}]')
    stamp(A, 2)
    A(f's_add_u32 m0, s{c.s_m0}, {(c.NS-1)*c.stage_bytes}')
    emit_loop(A, c, nact)
    stamp(A, 3)
    A('s_nop 7')
    A(f's_mul_i32 s42, s35, {112*1024}')
    A('s_lshl_b32 s43, s32, 12\ns_add_u32 s42, s42, s43')
    A(f's_add_u32 s42, s42, {WS_H1}')
    cnt = 0
    for tb in range(4):
        for j in range(4):
            d = 24 + 4*(cnt % 4); cnt += 1
            b0, b1 = c.accbase(2*j, tb), c.accbase(2*j+1, tb)
            A(f'v_cvt_pk_bf16_f32 v{d}, v{b0}, v{b0+1}\nv_cvt_pk_bf16_f32 v{d+1}, v{b0+2}, v{b0+3}')
            A(f'v_cvt_pk_bf16_f32 v{d+2}, v{b1}, v{b1+1}\nv_cvt_pk_bf16_f32 v{d+3}, v{b1+2}, v{b1+3}')
            for q in range(4): A(f'v_pk_max_i16 v{d+q}, v{d+q}, 0')
            A(f'buffer_store_dwordx4 v[{d}:{d+3}], v16, s[8:11], s42 offen offset:{j*1024} sc1')
        if tb < 3: A(f's_add_u32 s42, s42, {112*1024}')
    A.label(name + '_w1skip')
    stamp(A, 4)

def phase_w2(A, name, c):
    emit_act_addr(A, c, 'v1', 's35')
    for r in range(64): A(f'v_mov_b32 v{c.acc+r}, 0')
    A('s_lshr_b32 s40, s31, 1\ns_lshl_b32 s40, s40, 1\ns_add_u32 s40, s40, s69')
    sync_wait(A, 3, 's40', 14)
    stamp(A, 1)
    hstamp(A, 10)
    nact = emit_act_prologue(A, c)
    for q in range(16): A(f'v_accvgpr_read_b32 v{X1R+q}, a{A_X1+q}')
    A(f's_add_u32 m0, s{c.s_m0}, {(c.NS-1)*c.stage_bytes}')
    emit_loop(A, c, nact)
    stamp(A, 2)
    hstamp(A, 11)
    exchange_send(A, name + '_w2', c, WS_XB1 + 8192, WS_FLG + 1024*128)
    modsum_issue(A, [5], 6, 's34', 'v18', 112, 40)
    load_stats2(A, 's35', 2, 96, 'v46')
    exchange_flag(A, 16)
    A('s_waitcnt vmcnt(1)')
    modsum_finish(A, [5], 6, 112, 'v18', LSC)
    A('s_waitcnt lgkmcnt(0)\ns_barrier')
    A(f'v_add_u32 v18, {LSC}, v17')
    for fb in range(4):
        A(f'ds_read_b128 v[{80+4*fb}:{83+4*fb}], v18 offset:{fb*64}')
    finish_stats(A, 2, 96, 20, 22, 44)
    for tb in range(2): A(f'v_rcp_f32 v{22+tb}, v{22+tb}')
    A('v_and_b32 v24, 15, v1\nv_lshlrev_b32 v24, 11, v24')
    A('v_bfe_u32 v25, v1, 4, 1\nv_lshl_add_u32 v24, v25, 5, v24')
    A('v_lshrrev_b32 v25, 5, v1\nv_lshl_add_u32 v24, v25, 4, v24')
    A('s_lshl_b32 s43, s35, 15\ns_add_u32 s43, s43, s33')
    A('s_waitcnt lgkmcnt(0)')
    exchange_recv(A, name + '_w2', c, flag=False)
    stamp(A, 3)
    for tb in range(2):
        X = 224
        for fb in range(4):
            xr = 64 + 8*tb + 4*(fb // 2) + 2*(fb % 2)
            for r in range(4): A(f'v_mul_f32 v{c.accbase(fb,tb)+r}, v{c.accbase(fb,tb)+r}, v{22+tb}')
            for h in range(2):
                unpack_lo(A, f'v{X+4*fb+2*h}', f'v{xr+h}'); unpack_hi(A, f'v{X+4*fb+2*h+1}', f'v{xr+h}')
            for r in range(4):
                A(f'v_fmac_f32 v{X+4*fb+r}, v{80+4*fb+r}, v{c.accbase(fb, tb)+r}')
        P = 240 + 8*tb
        for q in range(8): A(f'v_cvt_pk_bf16_f32 v{P+q}, v{X+2*q}, v{X+2*q+1}')
        for j in range(2):
            A(f'v_permlane16_swap_b32 v{P+4*j}, v{P+4*j+2}')
            A(f'v_permlane16_swap_b32 v{P+4*j+1}, v{P+4*j+3}')
        for j in range(2):
            A(f'buffer_store_dwordx4 v[{P+4*j}:{P+4*j+3}], v24, s[16:19], s43 offen offset:{j*64}{OUT_POL}')
        if tb == 0: A('s_add_u32 s43, s43, 32768')
    stamp(A, 4)
```

```python
import sys, os
from common import *
import hazard
from k_prep import *
NAME = 'adaLN_cond__sliding_block_cached__dense_activation_relu__prompt'
HEADER = open('cdna_kernels/' + NAME + '.s.ref').read().split('; Override launch geometry')[0]

def build(kernels, out, with_meta=False, verbose=False):
    A = Asm()
    descs = []
    hdr = HEADER
    for (fn, name, grid, lds) in kernels:
        hdr += f'; @launch kernel={name} grid=({grid},1,1) block=(256,1,1) lds={lds}\n'
    A('.amdgcn_target "amdgcn-amd-amdhsa--gfx950"\n.text')
    seen = set()
    for (fn, name, grid, lds) in kernels:
        if name in seen: continue
        seen.add(name)
        descs.append(fn(A, name))
    lines, n = hazard.fix(A.lines, verbose)
    A.lines = lines
    A('.section .rodata,"a"\n.p2align 6')
    for (name, vg, ag, sg) in descs:
        A(kernel_desc(name, vg, ag, sg))
    txt = hdr + A.text()
    if with_meta:
        txt += metadata([(name, ((vg+3)//4*4 + ag) if ag else vg, sg, 256) for (name, vg, ag, sg) in descs])
    open(out, 'w').write(txt)
    print(out, 'bytes', len(txt), 'nops inserted', n)
    return [(name, grid, lds) for (fn, name, grid, lds) in kernels]

PERSIST = True
EXTRA = ''
def k_triv(A, name):
    A(kernel_header(name))
    A('s_endpgm')
    return (name, 8, 0, 16)
def kernel_list():
    ks = kernel_list0()
    if 'f' in EXTRA: ks = [(k_triv, 'triv_kernel', 1, 0)] + ks
    if 'm' in EXTRA: ks = ks[:1] + [(k_triv, 'triv_kernel', 1, 0)] + ks[1:]
    if 'e' in EXTRA: ks = ks + [(k_triv, 'triv_kernel', 1, 0)]
    return ks
def kernel_list0():
    if PERSIST:
        from k_main import k_main
        from k_prep import k_prep2, k_prep3
        import k_main as km
        if km.XHAT: return [(k_prep3, 'prep_kernel', 704, 8192), (k_main, 'main_kernel', 256, 147456)]
        return [(k_prep2, 'prep_kernel', 448, 12288), (k_main, 'main_kernel', 256, 147456)]
    ks = [(k_prep, 'prep_kernel', 192, 12288), (k_ln1, 'ln1_kernel', 320, 12288)]
    try:
        from k_attn import k_qattn
        ks.append((k_qattn, 'qattn_kernel', 256, 147456))
        from k_gemm import k_wo, k_w1, k_w2
        ks += [(k_wo, 'wo_kernel', 256, 139264), (k_w1, 'w1_kernel', 224, 67584), (k_w2, 'w2_kernel', 256, 139264)]
    except ImportError as e:
        print('partial build:', e)
    return ks

def variant(tag, stamps=False, clk=False, **opts):
    import importlib, json, common
    saved = []
    for k, val in opts.items():
        mod, attr = k.split('__')
        m = sys.modules['__main__'] if (mod == 'build' and __name__ == '__main__') else importlib.import_module(mod)
        saved.append((m, attr, getattr(m, attr)))
        setattr(m, attr, val)
    common.STAMPS = stamps; common.STAMP_CLK = clk
    l = build(kernel_list(), f'var_{tag}.s', with_meta=True)
    common.STAMPS = False; common.STAMP_CLK = False
    json.dump(l, open(f'var_{tag}.json', 'w'))
    for m, attr, v in saved: setattr(m, attr, v)

def hvariant(tag, **opts):
    import importlib, common
    saved = []
    for k, val in opts.items():
        mod, attr = k.split('__')
        m = importlib.import_module(mod)
        saved.append((m, attr, getattr(m, attr)))
        setattr(m, attr, val)
    common.STAMPS = False
    build(kernel_list(), f'h_{tag}.s', with_meta=False)
    for m, attr, v in saved: setattr(m, attr, v)

if __name__ == '__main__':
    import json
    import common
    ks = kernel_list()
    common.STAMPS = True
    l = build(ks, 'dev.s', with_meta=True)
    json.dump(l, open('dev.json', 'w'))
    common.STAMP_CLK = True
    l = build(ks, 'devclk.s', with_meta=True)
    json.dump(l, open('devclk.json', 'w'))
    common.STAMP_CLK = False
    common.STAMPS = False
    build(ks, 'dev_nostamp.s', with_meta=True)
    build(ks, 'cdna_kernels/' + NAME + '.s', with_meta=False)
```
